```python
import torch

def _softmax(x, axis=-1):
    return torch.softmax(x, dim=axis)
def _gelu(x):
    return torch.nn.functional.gelu(x, approximate="tanh")
def _silu(x):
    return torch.nn.functional.silu(x)
def _sigmoid(x):
    return torch.sigmoid(x)
def _layernorm(x, axis=-1, eps=1e-5):
    m = x.mean(dim=axis, keepdim=True)
    v = x.var(dim=axis, keepdim=True, unbiased=False)
    return (x - m) / torch.sqrt(v + eps)
def _scatter_add(tgt, idx, src, axis=0):
    return tgt.clone().index_add_(axis, idx, src)
def _segment_sum(src, seg, n):
    out = torch.zeros((n,) + src.shape[1:], dtype=src.dtype)
    return out.index_add_(0, seg, src)
def _pad(x, pw):
    flat = tuple(v for pair in reversed(pw) for v in pair)
    return torch.nn.functional.pad(x, flat)

kernel_name = 'concat_heads__ssm_conv_h3__spectral_fnet__prompt'

def setup_inputs():

    _w = (lambda a: (lambda t: t.to(torch.bfloat16) if t.is_floating_point() else t)(torch.as_tensor(a)))
    def _A_setup():
        B, S, D = 1, 2048, 576
        ks = 4
        return {
            "q": _w((lambda *s: torch.randn(*s, dtype=torch.bfloat16) * 0.05)(B, S, D)),
            "k": _w((lambda *s: torch.randn(*s, dtype=torch.bfloat16) * 3.2)(B, S, D)),
            "v": _w((lambda *s: torch.randn(*s, dtype=torch.bfloat16) * 3.2)(B, S, D)),
            "shift_k": _w((lambda *s: torch.randn(*s, dtype=torch.bfloat16) * 3.2)(D, ks) * 0.5),
            "ssm_k": _w((lambda *s: torch.randn(*s, dtype=torch.bfloat16) * 3.2)(D, S) * (1.0 / S ** 0.5)),
            "ssm_D": _w((lambda *s: torch.randn(*s, dtype=torch.bfloat16) * 3.2)(D)),
        }
    _A_in = _A_setup()

    def _B_setup():
        B, S, D = 1, 2048, 576
        ns = torch.arange(S)[:, None] * torch.arange(S)[None, :]
        nd = torch.arange(D)[:, None] * torch.arange(D)[None, :]
        Ws_re = torch.cos(-2.0 * torch.pi * ns / S).to(float)
        Ws_im = torch.sin(-2.0 * torch.pi * ns / S).to(float)
        Wd_re = torch.cos(-2.0 * torch.pi * nd / D).to(float)
        Wd_im = torch.sin(-2.0 * torch.pi * nd / D).to(float)
        return {
            "x": _w((lambda *s: torch.randn(*s, dtype=torch.bfloat16) * 0.05)(B, S, D)),
            "dft_seq_re": _w(Ws_re),
            "dft_seq_im": _w(Ws_im),
            "dft_hid_re": _w(Wd_re),
            "dft_hid_im": _w(Wd_im),
        }
    _B_in = _B_setup()

    return {
        "A_q": _A_in["q"],
        "A_k": _A_in["k"],
        "A_v": _A_in["v"],
        "A_shift_k": _A_in["shift_k"],
        "A_ssm_k": _A_in["ssm_k"],
        "A_ssm_D": _A_in["ssm_D"],
        "B_x": _B_in["x"],
        "B_dft_seq_re": _B_in["dft_seq_re"],
        "B_dft_seq_im": _B_in["dft_seq_im"],
        "B_dft_hid_re": _B_in["dft_hid_re"],
        "B_dft_hid_im": _B_in["dft_hid_im"],
    }

def reference(A_q, A_k, A_v, A_shift_k, A_ssm_k, A_ssm_D, B_x, B_dft_seq_re, B_dft_seq_im, B_dft_hid_re, B_dft_hid_im):
    def _A_ref(q, k, v, shift_k, ssm_k, ssm_D):
        B, S, D = q.shape
        ks = shift_k.shape[-1]
        k_pad = _pad(k, ((0, 0), (ks - 1, 0), (0, 0)))
        k_shift = torch.zeros_like(k)
        for t in range(ks):
            k_shift = k_shift + k_pad[:, t:t + S, :] * shift_k[:, ks - 1 - t][None, None, :]
        kv = k_shift * v
        L = 2 * S
        kv_pad = _pad(kv, ((0, 0), (0, S), (0, 0)))
        kf_pad = _pad(ssm_k, ((0, 0), (0, S)))
        kv_f = (lambda x, axes=(-2,-1): torch.fft.rfft2(x.float(), dim=axes))(kv_pad[:, None, :, :], axes=(1, 2))
        kf_f = (lambda x, axes=(-2,-1): torch.fft.rfft2(x.float(), dim=axes))(kf_pad[:, None, :], axes=(1, 2))
        kf_f = (lambda x, *d: x.permute(*d))(kf_f, 1, 2, 0)
        y_f = kv_f * kf_f[None, :, :, :]
        y = (lambda x, s, axes=(-2,-1): torch.fft.irfft2(x, s=s, dim=axes).to(torch.bfloat16))(y_f, (1, L), axes=(1, 2))[:, 0, :S, :]
        y = y + kv * ssm_D[None, None, :]
        return q * y

    def _B_ref(x, dft_seq_re, dft_seq_im, dft_hid_re, dft_hid_im):
        a = torch.einsum("bsd,ed->bse", x, dft_hid_re)
        b = torch.einsum("bsd,ed->bse", x, dft_hid_im)
        y = torch.einsum("ts,bse->bte", dft_seq_re, a) - torch.einsum("ts,bse->bte", dft_seq_im, b)
        return y

    a = _A_ref(A_q, A_k, A_v, A_shift_k, A_ssm_k, A_ssm_D)
    b = _B_ref(B_x, B_dft_seq_re, B_dft_seq_im, B_dft_hid_re, B_dft_hid_im)
    return torch.concatenate([a, b], axis=-1)
```

```python
import re

REG_RE = re.compile(r'(?<![\w.])([vas])(?:(\d+)|\[(\d+):(\d+)\])(?![\w])')
TRANS = ('v_sin_f32', 'v_cos_f32', 'v_exp_f32', 'v_log_f32', 'v_rcp_f32', 'v_rsq_f32', 'v_sqrt_f32')


def regs_of(op):
    out = set()
    for m in REG_RE.finditer(op):
        k = m.group(1)
        if m.group(2) is not None:
            out.add((k, int(m.group(2))))
        else:
            for i in range(int(m.group(3)), int(m.group(4)) + 1):
                out.add((k, i))
    if re.search(r'\bvcc\b', op):
        out.add(('x', 'vcc'))
    if re.search(r'\bexec(_lo|_hi)?\b', op):
        out.add(('x', 'exec'))
    if re.search(r'\bm0\b', op):
        out.add(('x', 'm0'))
    return out


def split_ops(s):
    out, depth, cur = [], 0, ''
    for ch in s:
        if ch in '[(':
            depth += 1
        if ch in '])':
            depth -= 1
        if ch == ',' and depth == 0:
            out.append(cur.strip())
            cur = ''
        else:
            cur += ch
    if cur.strip():
        out.append(cur.strip())
    return out


class Ins:
    def __init__(self, text):
        self.text = text
        t = text.split(';')[0].strip()
        parts = t.split(None, 1)
        self.op = parts[0]
        rest = parts[1] if len(parts) > 1 else ''
        ops = split_ops(rest)
        self.ops = ops
        op = self.op
        self.w, self.r = set(), set()
        self.kind = 'other'
        self.srcC = set()
        self.ab = set()
        self.passes = 0
        self.states = 1
        allr = [regs_of(re.sub(r'\b(op_sel|op_sel_hi|neg_lo|neg_hi|offset\d?|bitop3|row_\w+|wave_\w+|bank_mask|quad_perm|dst_sel|src\d_sel|dst_unused):\S+', '', o)) for o in ops]
        if op.startswith('v_mfma'):
            self.kind = 'mfma'
            self.w = allr[0]
            self.ab = allr[1] | allr[2]
            self.srcC = allr[3]
            self.r = self.ab | self.srcC
            self.passes = 4 if '16x16x32' in op else 8
        elif op.startswith('v_'):
            self.kind = 'valu'
            self.w = set(allr[0])
            srcs = allr[1:]
            if op.startswith(('v_add_co', 'v_sub_co', 'v_addc_co', 'v_subb_co', 'v_mad_u64')):
                self.w |= allr[1]
                srcs = allr[2:]
            for s in srcs:
                self.r |= s
            if op.startswith(('v_fmac', 'v_dot2c', 'v_permlane', 'v_writelane')) or '_dpp' in op or 'UNUSED_PRESERVE' in t:
                self.r |= allr[0]
            if op.startswith('v_permlane'):
                self.w |= allr[1]
            if op.startswith('v_cmpx'):
                self.w.add(('x', 'exec'))
        elif op.startswith('ds_'):
            self.kind = 'ds'
            if op.startswith(('ds_read', 'ds_bpermute', 'ds_permute', 'ds_swizzle')):
                self.w = allr[0]
                for s in allr[1:]:
                    self.r |= s
            else:
                for s in allr:
                    self.r |= s
        elif op.startswith(('buffer_', 'global_')):
            self.kind = 'vmem'
            is_lds = bool(re.search(r'\blds\b', t)) or 'load_lds' in op
            self.is_lds = is_lds
            if op in ('buffer_inv', 'buffer_wbl2'):
                pass
            elif ('_load' in op and not is_lds) or ('atomic' in op and re.search(r'\bsc0\b', t) and op.startswith('global')):
                self.w = allr[0]
                for s in allr[1:]:
                    self.r |= s
            else:
                for s in allr:
                    self.r |= s
                if 'atomic' in op and re.search(r'\bsc0\b', t):
                    self.w = allr[0]
            if is_lds:
                self.r.add(('x', 'm0'))
            self.wide_store = set()
            if '_store_dwordx4' in op or '_store_dwordx3' in op:
                self.wide_store = allr[0] if op.startswith('buffer') else allr[1]
        elif op.startswith(('s_load', 's_buffer_load', 's_memtime', 's_memrealtime')):
            self.kind = 'smem'
            self.w = allr[0]
            for s in allr[1:]:
                self.r |= s
        elif op == 's_nop':
            self.kind = 'nop'
            self.states = int(ops[0], 0) + 1
        elif op.startswith('s_'):
            self.kind = 'salu'
            if op.startswith(('s_cmp', 's_waitcnt', 's_barrier', 's_branch', 's_cbranch', 's_endpgm', 's_setprio', 's_sleep', 's_bitcmp')):
                for s in allr:
                    self.r |= s
            else:
                self.w = set(allr[0]) if allr else set()
                for s in allr[1:]:
                    self.r |= s
                if 'saveexec' in op:
                    self.w.add(('x', 'exec'))
                if op in ('s_addk_i32', 's_mulk_i32'):
                    self.r |= allr[0]


def need_states(p, c):
    n = 0
    cw, cr = c.w, c.r
    if p.kind == 'valu':
        vw = {x for x in p.w if x[0] in 'va'}
        sw = {x for x in p.w if x[0] == 's' or x == ('x', 'vcc')}
        if c.kind == 'mfma' and vw & cr:
            n = max(n, 2)
        if c.kind == 'valu':
            if c.op.startswith(('v_readfirstlane', 'v_readlane')) and vw & cr:
                n = max(n, 1)
            if ('_dpp' in c.op or c.op.startswith('v_permlane')) and vw & cr:
                n = max(n, 2)
            if sw & cr:
                n = max(n, 4 if c.op.startswith(('v_readlane', 'v_writelane')) else 2)
            if p.op.startswith(TRANS) and not c.op.startswith(TRANS) and vw & cr:
                n = max(n, 1)
            if 'sdwa' in p.op and vw & (cr | cw):
                n = max(n, 1)
        if p.op.startswith('v_dot') and c.kind in ('valu', 'mfma', 'ds', 'vmem') and vw & (cr | cw):
            same = c.op == p.op
            if same:
                ab = set()
                for o in (c.ops[1:3]):
                    ab |= regs_of(o)
                if vw & ab:
                    n = max(n, 3)
            else:
                n = max(n, 3)
        if c.kind == 'vmem' and sw & cr:
            n = max(n, 5)
        if c.kind == 'salu' and sw & cr:
            n = max(n, 1)
        if ('x', 'exec') in p.w:
            n = max(n, 5)
    if p.kind == 'mfma':
        big = {4: 8, 8: 12}[p.passes]
        if c.kind == 'mfma':
            if p.w & c.ab:
                n = max(n, big)
            if p.w & c.srcC and p.w != c.srcC:
                n = max(n, {4: 6, 8: 10}[p.passes])
            if p.w & c.w and not (p.w & c.srcC):
                n = max(n, {4: 6, 8: 10}[p.passes])
        elif c.kind in ('valu', 'ds', 'vmem') and p.w & (cr | cw):
            n = max(n, big)
        if c.kind == 'valu' and p.srcC & cw:
            n = max(n, {4: 3, 8: 7}[p.passes])
    if p.kind == 'salu' and ('x', 'm0') in p.w and c.kind in ('vmem', 'ds') and ('x', 'm0') in cr:
        n = max(n, 1)
    if p.kind == 'vmem' and getattr(p, 'wide_store', None) and p.wide_store & cw:
        n = max(n, 2)
    return n


class Asm:
    def __init__(self):
        self.out = []
        self.reset_state()
        self.nops = 0

    def reset_state(self):
        self.hist = []
        self.vm = []
        self.lg = []

    def raw(self, s):
        self.out.append(s)

    def label(self, l):
        self.out.append(l + ':')

    def comment(self, s):
        self.out.append('    ; ' + s)

    def _push(self, ins):
        self.out.append('    ' + ins.text)
        self.hist.append(ins)
        if len(self.hist) > 24:
            self.hist.pop(0)

    def _wait(self, vm=None, lg=None):
        parts = []
        if vm is not None and vm < len(self.vm):
            assert vm <= 63
            parts.append('vmcnt(%d)' % vm)
            self.vm = self.vm[len(self.vm) - vm:] if vm else []
        if lg is not None and lg < len(self.lg):
            if any(i.kind == 'smem' for i in self.lg):
                lg = 0
            lg = min(lg, 14)
            parts.append('lgkmcnt(%d)' % lg)
            self.lg = self.lg[len(self.lg) - lg:] if lg else []
        if parts:
            self._push(Ins('s_waitcnt ' + ' '.join(parts)))

    def wait_for(self, *ops):
        vm = lg = None
        for o in ops:
            if o in self.vm:
                n = len(self.vm) - 1 - self.vm.index(o)
                vm = n if vm is None else min(vm, n)
            if o in self.lg:
                n = len(self.lg) - 1 - self.lg.index(o)
                lg = n if lg is None else min(lg, n)
        self._wait(vm, lg)

    def wait_all(self, vm=True, lg=True):
        self._wait(0 if vm else None, 0 if lg else None)

    def __call__(self, text):
        ins = Ins(text)
        touch = ins.r | ins.w
        deps = [o for o in self.vm + self.lg if o.w & touch]
        if deps:
            self.wait_for(*deps)
        need, dist = 0, 0
        for p in reversed(self.hist):
            n = need_states(p, ins)
            if n - dist > need:
                need = n - dist
            dist += p.states
            if dist > 16:
                break
        if need > 0:
            self.nops += need
            self._push(Ins('s_nop %d' % (need - 1)))
        if ins.op == 's_waitcnt':
            m = re.search(r'vmcnt\((\d+)\)', text)
            if m:
                k = int(m.group(1))
                self.vm = self.vm[len(self.vm) - k:] if 0 < k < len(self.vm) else ([] if k == 0 else self.vm)
            m = re.search(r'lgkmcnt\((\d+)\)', text)
            if m:
                k = int(m.group(1))
                self.lg = self.lg[len(self.lg) - k:] if 0 < k < len(self.lg) else ([] if k == 0 else self.lg)
        self._push(ins)
        if ins.kind == 'vmem':
            self.vm.append(ins)
            assert len(self.vm) <= 63, 'too many outstanding vmem'
        if ins.kind in ('ds', 'smem'):
            self.lg.append(ins)
        return ins

    def text(self):
        return '\n'.join(self.out) + '\n'


def vr(i, n=1, k='v'):
    return '%s%d' % (k, i) if n == 1 else '%s[%d:%d]' % (k, i, i + n - 1)


def f2u(x):
    import struct
    return '0x%08x' % struct.unpack('<I', struct.pack('<f', x))[0]
```

```python
import math, sys
from asmlib import Asm, vr, f2u

NAME = 'concat_heads__ssm_conv_h3__spectral_fnet__prompt'
ARR = 2359296
G_OFF = ARR
G_SIZE = 36 * 128 * 576
PITCHG = 4640

OPT = dict(a.split('=') for a in sys.argv[2:] if '=' in a)


def srd(a, d, base, size):
    a('s_mov_b32 s%d, s%d' % (d, base))
    a('s_and_b32 s%d, s%d, 0xffff' % (d + 1, base + 1))
    a('s_mov_b32 s%d, %d' % (d + 2, size))
    a('s_mov_b32 s%d, 0x20000' % (d + 3))


def k1a(a):
    a.comment('---- K1/A: kv product, transposed into ws ----')
    a('s_load_dwordx4 s[4:7], s[0:1], 8')
    a('s_load_dwordx2 s[8:9], s[0:1], 24')
    a('s_load_dwordx2 s[10:11], s[0:1], 104')
    a('v_lshrrev_b32 v1, 6, v0')
    a('v_and_b32 v2, 63, v0')
    a('v_readfirstlane_b32 s28, v1')
    a('s_sub_u32 s3, s2, 128')
    a('s_and_b32 s29, s3, 7')
    a('s_lshr_b32 s30, s3, 3')
    a('s_lshl_b32 s31, s29, 1')
    a('s_add_u32 s31, s31, s30')
    a('s_sub_u32 s31, s31, 16')
    a('s_cmp_lt_u32 s30, 16')
    a('s_cselect_b32 s29, s29, 8')
    a('s_cselect_b32 s30, s30, s31')
    a('s_lshl_b32 s31, s30, 2')
    a('s_add_u32 s31, s31, s28')
    a('s_mul_i32 s32, s31, %d' % (32 * 1152))
    a('s_lshl_b32 s33, s29, 7')
    a('s_add_u32 s32, s32, s33')
    a('s_sub_u32 s32, s32, %d' % (4 * 1152))
    a('v_lshrrev_b32 v3, 3, v2')
    a('v_and_b32 v4, 7, v2')
    a('v_mul_u32_u24 v3, 1152, v3')
    a('v_lshl_add_u32 v3, v4, 4, v3')
    a('v_add_u32 v3, s32, v3')
    a('v_add_u32 v4, 9216, v3')
    a('v_add_u32 v5, 4608, v3')
    a('s_mul_i32 s34, s28, 9216')
    a('s_mov_b32 s35, 9216')
    a('s_mov_b32 s36, 18432')
    a('s_mov_b32 s37, 27648')
    srd(a, 12, 4, ARR)
    srd(a, 16, 6, ARR)
    so = ['0', 's35', 's36', 's37']
    dm = []
    a('s_mov_b32 m0, s34')
    dm.append(a('buffer_load_dwordx4 v3, s[12:15], 0 offen lds'))
    for i in range(1, 4):
        a('s_add_u32 m0, s34, %d' % (1024 * i))
        dm.append(a('buffer_load_dwordx4 v4, s[12:15], %s offen lds' % so[i - 1]))
    a('s_add_u32 m0, s34, 4096')
    a('s_mov_b32 exec_hi, 0')
    dm.append(a('buffer_load_dwordx4 v4, s[12:15], s37 offen lds'))
    a('s_mov_b32 exec_hi, -1')
    for i in range(4):
        a('s_add_u32 m0, s34, %d' % (5120 + 1024 * i))
        dm.append(a('buffer_load_dwordx4 v5, s[16:19], %s offen lds' % so[i]))
    srd(a, 24, 8, 4608)
    a('s_lshl_b32 s33, s29, 9')
    a('v_lshlrev_b32 v6, 3, v2')
    a('buffer_load_dwordx2 v[8:9], v6, s[24:27], s33 offen')
    srd(a, 20, 10, ARR)
    a('v_bfe_u32 v6, v2, 2, 2')
    a('v_lshlrev_b32 v6, 7, v6')
    a('v_lshrrev_b32 v7, 4, v2')
    a('v_lshl_add_u32 v6, v7, 5, v6')
    a('v_and_b32 v7, 3, v2')
    a('v_lshl_add_u32 v6, v7, 3, v6')
    a('v_add_u32 v6, s34, v6')
    a('v_xor_b32 v7, s28, v7')
    a('v_lshlrev_b32 v7, 4, v7')
    a('v_lshrrev_b32 v10, 2, v2')
    a('v_lshl_add_u32 v7, v10, 14, v7')
    a('s_lshl_b32 s38, s29, 18')
    a('s_lshl_b32 s39, s31, 8')
    a('s_add_u32 s38, s38, s39')
    a('s_mov_b32 s40, 0xffff')
    a('v_and_b32 v10, 0xffff0000, v9')
    a('v_bfi_b32 v11, s40, v9, v8')
    a('v_and_b32 v12, 0xffff, v8')
    a('v_alignbit_b32 v13, v9, v9, 16')
    a('v_alignbit_b32 v14, v8, v8, 16')
    a.wait_for(*dm)
    K, V = 16, 34
    for i in range(9):
        a('ds_read_b64_tr_b16 %s, v6 offset:%d' % (vr(K + 2 * i, 2), 512 * i))
        if i < 8:
            a('ds_read_b64_tr_b16 %s, v6 offset:%d' % (vr(V + 2 * i, 2), 5120 + 512 * i))
    E, U, OUT = 50, 58, 68
    for i in range(4):
        ms = [4 * i + d for d in range(4)]
        for d, m in enumerate(ms):
            a('v_dot2_f32_bf16 v%d, v%d, v10, 0' % (E + 2 * d, K + m))
            a('v_dot2_f32_bf16 v%d, v%d, v13, 0' % (E + 2 * d + 1, K + m + 1))
        for d, m in enumerate(ms):
            a('v_dot2_f32_bf16 v%d, v%d, v11, v%d' % (E + 2 * d, K + m + 1, E + 2 * d))
            a('v_dot2_f32_bf16 v%d, v%d, v14, v%d' % (E + 2 * d + 1, K + m + 2, E + 2 * d + 1))
        for d, m in enumerate(ms):
            a('v_dot2_f32_bf16 v%d, v%d, v12, v%d' % (E + 2 * d, K + m + 2, E + 2 * d))
        for d, m in enumerate(ms):
            a('v_lshlrev_b32 v%d, 16, v%d' % (U + 2 * d, V + m))
            a('v_and_b32 v%d, 0xffff0000, v%d' % (U + 2 * d + 1, V + m))
        for d, m in enumerate(ms):
            a('v_pk_mul_f32 %s, %s, %s' % (vr(U + 2 * d, 2), vr(E + 2 * d, 2), vr(U + 2 * d, 2)))
        for d, m in enumerate(ms):
            a('v_cvt_pk_bf16_f32 v%d, v%d, v%d' % (OUT + 4 * i + 3 - d, U + 2 * d + 1, U + 2 * d))
        a('buffer_store_dwordx4 %s, v7, s[20:23], s38 offen offset:%d' % (vr(OUT + 4 * i, 4), 64 * i))
    a('s_endpgm')


def k1b(a):
    UU, TT = 18432, 36864
    a('s_load_dwordx2 s[4:5], s[0:1], 48')
    a('s_load_dwordx2 s[10:11], s[0:1], 104')
    a('v_lshrrev_b32 v1, 6, v0')
    a('v_and_b32 v2, 63, v0')
    a('v_readfirstlane_b32 s28, v1')
    a('v_lshlrev_b32 v3, 4, v2')
    a('v_add_u32 v7, 146304, v3')
    a('v_cmp_le_u32 vcc, 8, v2')
    a('v_cmp_le_u32 s[30:31], 16, v2')
    a('v_cmp_le_u32 s[32:33], 24, v2')
    a('v_cndmask_b32 v4, v3, v7, vcc')
    a('v_cndmask_b32 v5, v3, v7, s[30:31]')
    a('v_cndmask_b32 v6, v3, v7, s[32:33]')
    a('s_lshl_b32 s29, s28, 9')
    a('s_add_u32 s29, s29, s2')
    a('s_mul_i32 s29, s29, 1152')
    a('s_add_u32 s34, s29, 1024')
    a('s_add_u32 s35, s29, %d' % (2048 + 146304))
    a('s_add_u32 s36, s29, %d' % (3072 + 2 * 146304))
    a('s_add_u32 s37, s29, %d' % (4096 + 3 * 146304))
    a('s_mul_i32 s38, s28, 4608')
    srd(a, 12, 4, ARR)
    dm = []
    for k, (vo, so) in enumerate([(3, 29), (4, 34), (5, 35), (6, 36), (3, 37)]):
        a('s_add_u32 m0, s38, %d' % (1024 * k))
        if k == 4:
            a('s_mov_b32 exec_hi, 0')
        dm.append(a('buffer_load_dwordx4 v%d, s[12:15], s%d offen lds' % (vo, so)))
    a('s_mov_b32 exec_hi, -1')
    a('s_add_u32 s10, s10, %d' % G_OFF)
    a('s_addc_u32 s11, s11, 0')
    srd(a, 16, 10, G_SIZE)
    a('v_and_b32 v3, 15, v2')
    a('v_lshrrev_b32 v4, 4, v2')
    XA = 8
    a('v_mul_u32_u24 v5, 5, v3')
    a('v_mul_u32_u24 v6, 57, v5')
    a('v_lshrrev_b32 v6, 9, v6')
    a('v_mul_u32_u24 v6, 9, v6')
    a('v_sub_u32 v5, v5, v6')
    a('v_mul_u32_u24 v6, 1152, v4')
    a('v_lshl_add_u32 v6, v3, 3, v6')
    a('v_add_u32 v6, s38, v6')
    a('v_lshl_add_u32 v%d, v5, 7, v6' % XA)
    a('v_add_u32 v7, 1024, v6')
    for j in range(1, 9):
        a('v_cmp_eq_u32 vcc, v%d, v7' % (XA + j - 1))
        a('v_add_u32 v%d, 128, v%d' % (XA + j, XA + j - 1))
        a('v_cndmask_b32 v%d, v%d, v6, vcc' % (XA + j, XA + j))
    a('s_lshl_b32 s39, s28, 2')
    a('v_add_u32 v5, s39, v4')
    a('v_lshrrev_b32 v6, 1, v5')
    a('v_lshrrev_b32 v7, 1, v3')
    a('v_xor_b32 v6, v6, v7')
    a('v_lshlrev_b32 v6, 4, v6')
    a('v_lshl_add_u32 v6, v5, 7, v6')
    a('v_and_b32 v7, 1, v3')
    a('v_lshl_add_u32 v6, v7, 3, v6')
    a('v_add_u32 v17, %d, v6' % UU)
    a('v_lshrrev_b32 v6, 1, v3')
    a('v_xor_b32 v6, v6, v4')
    a('v_lshlrev_b32 v6, 4, v6')
    a('v_lshl_add_u32 v6, v3, 7, v6')
    a('v_add_u32 v18, %d, v6' % UU)
    a('v_xor_b32 v19, 64, v18')
    a('s_lshl_b32 s39, s28, 4')
    a('v_add_u32 v5, s39, v3')
    a('v_mul_u32_u24 v6, 9, v5')
    a('v_mul_u32_u24 v7, %d, v4' % PITCHG)
    a('v_add_u32 v7, %d, v7' % TT)
    a('s_mov_b32 s40, 0x80008000')
    a('v_mov_b32 v31, s40')
    for p in range(5):
        if p:
            a('v_add_u32 v30, %d, v6' % (64 * p))
            a('v_subrev_u32 v32, 576, v30')
            a('v_min_u32 v30, v30, v32')
        else:
            a('v_mov_b32 v30, v6')
        a('v_sub_u32 v32, 576, v30')
        a('v_cmp_lt_u32 vcc, v32, v30')
        a('v_min_u32 v30, v30, v32')
        a('v_lshl_add_u32 v%d, v30, 4, v7' % (20 + p))
        a('v_cndmask_b32 v%d, 0, v31, vcc' % (25 + p))
    a('s_lshl_b32 s39, s28, 2')
    a('v_add_u32 v30, s39, v4')
    a('v_and_b32 v44, 3, v2')
    a('v_bfe_u32 v45, v2, 2, 2')
    a('v_mul_u32_u24 v46, %d, v44' % PITCHG)
    a('v_lshl_add_u32 v46, v45, 7, v46')
    a('v_add_u32 v46, %d, v46' % TT)
    a('s_mov_b32 s41, %d' % (9 * 73728))
    a('v_mul_lo_u32 v47, v45, s41')
    a('v_lshl_add_u32 v47, v44, 4, v47')
    a('s_mul_i32 s42, s2, 576')
    a('s_mov_b32 s43, %d' % (73728 - 576))
    for k in range(6):
        a('v_add_u32 v48, %d, v30' % (16 * k))
        if k == 5:
            a('v_cmp_lt_u32 vcc, 80, v48')
            a('v_min_u32 v48, 80, v48')
        a('v_mul_u32_u24 v49, 57, v48')
        a('v_lshrrev_b32 v49, 9, v49')
        a('v_mad_u32_u24 v50, v49, 23, v48')
        a('v_lshl_add_u32 v%d, v50, 4, v46' % (32 + k))
        a('v_lshl_add_u32 v50, v48, 6, v47')
        a('v_mad_u32_u24 v%d, v49, s43, v50' % (38 + k))
        if k == 5:
            a('v_cndmask_b32 v43, v43, v31, vcc')
    CF, SF, NF = 52, 60, 68
    a('v_cvt_f32_u32 v76, v5')
    a('v_mul_f32 v76, 0x3c800000, v76')
    a('v_lshlrev_b32 v77, 3, v4')
    a('v_cvt_f32_u32 v77, v77')
    a('v_mul_f32 v77, v77, v76')
    for kap in range(2):
        for i in range(0, 8, 2):
            for q in range(2):
                mul = 32 * kap + i + q
                if mul == 0:
                    a('v_mov_b32 v%d, v77' % (78 + q))
                else:
                    a('s_mov_b32 s44, %s' % f2u(float(mul)))
                    a('v_fma_f32 v%d, s44, v76, v77' % (78 + q))
            a('v_cos_f32 v80, v78')
            a('v_cos_f32 v81, v79')
            a('v_sin_f32 v82, v78')
            a('v_sin_f32 v83, v79')
            a('v_cvt_pk_bf16_f32 v%d, v80, v81' % (CF + 4 * kap + i // 2))
            a('v_cvt_pk_bf16_f32 v%d, v82, v83' % (SF + 4 * kap + i // 2))
            a('v_xor_b32 v%d, s40, v%d' % (NF + 4 * kap + i // 2, SF + 4 * kap + i // 2))
    A1, A2 = 84, 88
    a('v_cvt_f32_u32 v76, v3')
    a('v_cvt_f32_u32 v77, s2')
    a('v_add_f32 v78, -4.0, v76')
    a('v_add_f32 v78, -4.0, v78')
    a('v_mul_f32 v77, v77, v78')
    a('v_mul_f32 v77, 0x3a000000, v77')
    a('v_mul_f32 v76, 0x3d800000, v76')
    a('v_lshlrev_b32 v78, 2, v4')
    a('v_cvt_f32_u32 v78, v78')
    a('v_fma_f32 v92, v78, v76, v77')
    a('v_add_f32 v93, v92, v76')
    a('v_add_f32 v94, v93, v76')
    a('v_add_f32 v95, v94, v76')
    for i in range(4):
        a('v_cos_f32 v%d, v%d' % (96 + i, 92 + i))
        a('v_sin_f32 v%d, v%d' % (100 + i, 92 + i))
    a('v_cvt_pk_bf16_f32 v92, v96, v97')
    a('v_cvt_pk_bf16_f32 v93, v98, v99')
    a('v_cvt_pk_bf16_f32 v94, v100, v101')
    a('v_cvt_pk_bf16_f32 v95, v102, v103')
    a('v_xor_b32 v96, s40, v94')
    a('v_xor_b32 v97, s40, v95')
    a('s_bitcmp1_b32 s2, 3')
    a('s_cselect_b64 vcc, -1, 0')
    re_f, im_f = [92, 93, 94, 95], [96, 97, 92, 93]
    for i in range(4):
        a('v_cndmask_b32 v%d, v%d, v%d, vcc' % (A1 + i, re_f[i], im_f[i]))
        a('v_cndmask_b32 v%d, v%d, v%d, vcc' % (A2 + i, im_f[i], re_f[i]))
    c = [math.cos(2 * math.pi * k / 9) for k in range(5)]
    s = [math.sin(2 * math.pi * k / 9) for k in range(5)]
    cs = {'c1': (46, c[1]), 'c2': (47, c[2]), 'c4': (48, c[4]), 'h': (49, -0.5),
          's1': (50, s[1]), 's2': (51, s[2]), 's3': (52, s[3]), 's4': (53, s[4])}
    for r, val in cs.values():
        a('s_mov_b32 s%d, %s' % (r, f2u(val)))

    def cst(nm):
        r = cs[nm][0]
        return 's[%d:%d]' % (r & ~1, (r & ~1) + 1), r & 1

    def pfma(d, x, nm, acc, negc=False, nega=False):
        sp, hi = cst(nm)
        t = 'v_pk_fma_f32 %s, %s, %s, %s op_sel:[0,%d,0] op_sel_hi:[1,%d,1]' % (vr(d, 2), vr(x, 2), sp, vr(acc, 2), hi, hi)
        if negc or nega:
            t += ' neg_lo:[0,%d,%d] neg_hi:[0,%d,%d]' % (negc, nega, negc, nega)
        a(t)

    def pmul(d, x, nm, negc=False):
        sp, hi = cst(nm)
        t = 'v_pk_mul_f32 %s, %s, %s op_sel:[0,%d] op_sel_hi:[1,%d]' % (vr(d, 2), vr(x, 2), sp, hi, hi)
        if negc:
            t += ' neg_lo:[0,1] neg_hi:[0,1]'
        a(t)

    def padd(d, x, y, neg=False):
        a('v_pk_add_f32 %s, %s, %s%s' % (vr(d, 2), vr(x, 2), vr(y, 2), ' neg_lo:[0,1] neg_hi:[0,1]' if neg else ''))

    a.wait_for(*dm)
    XR = 104
    for j in range(9):
        a('ds_read_b64 %s, v%d' % (vr(XR + 2 * j, 2), XA + j))
    Z, AB, OU, PK = 122, 140, 156, 182
    for sg in range(2):
        for j in range(9):
            a('v_lshlrev_b32 v%d, 16, v%d' % (Z + 2 * ((j + 2 * sg) % 9), XR + 2 * j + sg))
            a('v_and_b32 v%d, 0xffff0000, v%d' % (Z + 2 * ((j + 2 * sg + 1) % 9) + 1, XR + 2 * j + sg))
        z = lambda k: Z + 2 * k
        A = lambda j: AB + 2 * (j - 1)
        B = lambda j: AB + 8 + 2 * (j - 1)
        o = lambda cidx: OU + 2 * cidx
        M, N, T, W = OU + 18, OU + 20, OU + 22, OU + 24
        for j in range(1, 5):
            padd(A(j), z(j), z(9 - j))
            padd(B(j), z(j), z(9 - j), neg=True)
        pfma(M, A(3), 'h', z(0))
        padd(N, z(0), A(3))
        padd(T, A(1), A(2))
        pmul(W, B(3), 's3', negc=True)
        pfma(o(1), A(1), 'c1', M)
        pfma(o(3), A(1), 'c2', M)
        pfma(o(7), A(1), 'c4', M)
        padd(T, T, A(4))
        pfma(o(2), B(1), 's1', W, negc=True)
        pfma(o(4), B(1), 's2', W, negc=True, nega=True)
        pfma(o(8), B(1), 's4', W, negc=True)
        padd(o(6), B(1), B(2), neg=True)
        pfma(o(1), A(2), 'c2', o(1))
        pfma(o(3), A(2), 'c4', o(3))
        pfma(o(7), A(2), 'c1', o(7))
        padd(o(0), N, T)
        pfma(o(2), B(2), 's2', o(2), negc=True)
        pfma(o(4), B(2), 's4', o(4), negc=True)
        pfma(o(8), B(2), 's1', o(8))
        padd(o(6), o(6), B(4))
        pfma(o(5), T, 'h', N)
        pfma(o(1), A(4), 'c4', o(1))
        pfma(o(3), A(4), 'c1', o(3))
        pfma(o(7), A(4), 'c2', o(7))
        pfma(o(2), B(4), 's4', o(2), negc=True)
        pfma(o(4), B(4), 's1', o(4))
        pfma(o(8), B(4), 's2', o(8))
        pmul(o(6), o(6), 's3', negc=True)
        for cidx in (0, 5, 1, 3, 7, 2, 4, 8, 6):
            a('v_cvt_pk_bf16_f32 v%d, v%d, v%d' % (PK + 2 * cidx + sg, o(cidx), o(cidx) + 1))
            if sg == 1:
                a('ds_write_b64 v17, %s offset:%d' % (vr(PK + 2 * cidx, 2), 2048 * cidx))
    a.wait_all(vm=False)
    a('s_barrier')
    UF = 104
    uf = lambda cidx, kap: vr(UF + 8 * cidx + 4 * kap, 4)
    for cidx in range(9):
        for kap in range(2):
            a('ds_read_b128 %s, v%d offset:%d' % (uf(cidx, kap), 18 + kap, 2048 * cidx))
    ZA = 176
    BF = 216
    GA = 236
    mf = 'v_mfma_f32_16x16x32_bf16'

    def h2(p):
        zr, zi = vr(ZA + 8 * p, 4), vr(ZA + 8 * p + 4, 4)
        if p == 0:
            seq = [(zr, 0, 0, CF), (zi, 0, 0, NF), (zr, 0, 1, CF), (zi, 0, 1, NF)]
        else:
            cr, ci = 2 * p - 1, 2 * p
            seq = [(zr, cr, 0, CF), (zi, cr, 0, NF), (zr, cr, 1, CF), (zi, cr, 1, NF),
                   (zr, ci, 0, SF), (zi, ci, 0, CF), (zr, ci, 1, SF), (zi, ci, 1, CF)]
        seen = set()
        for d, cidx, kap, cf in seq:
            a('%s %s, %s, %s, %s' % (mf, d, uf(cidx, kap), vr(cf + 4 * kap, 4), d if d in seen else '0'))
            seen.add(d)

    def pack(p):
        zz = ZA + 8 * p
        for i in range(4):
            a('v_cvt_pk_bf16_f32 v%d, v%d, v%d' % (BF + 4 * p + i, zz + 2 * i, zz + 2 * i + 1))
        a('v_xor_b32 v%d, v%d, v%d' % (BF + 4 * p + 2, 25 + p, BF + 4 * p + 2))
        a('v_xor_b32 v%d, v%d, v%d' % (BF + 4 * p + 3, 25 + p, BF + 4 * p + 3))

    def seqst(p):
        g = GA + 8 * (p & 1)
        a('%s %s, %s, %s, 0' % (mf, vr(g, 4), vr(A1, 4), vr(BF + 4 * p, 4)))
        a('%s %s, %s, %s, 0' % (mf, vr(g + 4, 4), vr(A2, 4), vr(BF + 4 * p, 4)))

    def fin(p):
        g = GA + 8 * (p & 1)
        for i in range(4):
            a('v_cvt_pk_bf16_f32 v%d, v%d, v%d' % (ZA + 8 * p + i, g + 2 * i, g + 2 * i + 1))
        a('ds_write_b128 v%d, %s' % (20 + p, vr(ZA + 8 * p, 4)))

    h2(0); h2(1); pack(0); seqst(0)
    h2(2); pack(1); fin(0); seqst(1)
    h2(3); pack(2); fin(1); seqst(2)
    h2(4); pack(3); fin(2); seqst(3)
    pack(4); seqst(4); fin(3); fin(4)
    a.wait_all(vm=False)
    a('s_barrier')
    RB = 104
    for k in range(6):
        a('ds_read_b64_tr_b16 %s, v%d' % (vr(RB + 4 * k, 2), 32 + k))
        a('ds_read_b64_tr_b16 %s, v%d offset:8' % (vr(RB + 4 * k + 2, 2), 32 + k))
    for k in range(6):
        a('buffer_store_dwordx4 %s, v%d, s[16:19], s42 offen' % (vr(RB + 4 * k, 4), 38 + k))
    a('s_endpgm')


def k2a(a):
    UB, HB, YB = 2304, 18688, 51968
    HW, YP = 8320, 576
    mf = 'v_mfma_f32_16x16x32_bf16'
    a('s_load_dwordx2 s[4:5], s[0:1], 0')
    a('s_load_dwordx4 s[8:11], s[0:1], 32')
    a('s_load_dwordx2 s[6:7], s[0:1], 88')
    a('s_load_dwordx2 s[12:13], s[0:1], 104')
    a('v_lshrrev_b32 v1, 6, v0')
    a('v_and_b32 v2, 63, v0')
    a('v_readfirstlane_b32 s28, v1')
    a('v_lshlrev_b32 v3, 4, v2')
    a('v_add_u32 v4, -4, v3')
    a('s_lshl_b32 s29, s3, 2')
    a('s_add_u32 s29, s29, s28')
    a('s_lshl_b32 s30, s29, 12')
    a('s_lshl_b32 s31, s28, 12')
    a('s_add_u32 s31, s31, %d' % UB)
    a('s_lshr_b32 s32, s29, 1')
    a('s_lshl_b32 s32, s32, 2')
    a.wait_all()
    a('s_load_dword s33, s[10:11], s32')
    a('s_add_u32 s8, s8, s30')
    a('s_addc_u32 s9, s9, 0')
    srd(a, 16, 8, 4096)
    srd(a, 20, 12, ARR)
    HD, HP = 64, 80
    hl = []
    for i in range(4):
        hl.append(a('buffer_load_dwordx4 %s, v3, s[16:19], 0 offen offset:%d' % (vr(HD + 4 * i, 4), 1024 * i)))
        if i == 0:
            hl.append(a('buffer_load_dword v%d, v4, s[16:19], 0 offen' % HP))
        else:
            hl.append(a('buffer_load_dword v%d, v3, s[16:19], 0 offen offset:%d' % (HP + i, 1024 * i - 4)))
    a('s_mov_b32 m0, s31')
    dm = []
    for i in range(4):
        dm.append(a('buffer_load_dwordx4 v3, s[20:23], s30 offen offset:%d lds' % (1024 * i)))
    srd(a, 24, 4, ARR)
    Q = 40
    a('v_mul_u32_u24 v5, 1152, v0')
    a('s_lshl_b32 s34, s3, 3')
    ql = []
    for j in range(8):
        a('s_add_u32 s35, s34, %d' % (256 * 1152 * j))
        ql.append(a('buffer_load_dwordx2 %s, v5, s[24:27], s35 offen' % vr(Q + 2 * j, 2)))
    srd(a, 36, 6, 2 * ARR)
    a('v_lshlrev_b32 v5, 1, v5')
    a('v_mov_b32 v6, 0')
    a('v_mov_b32 v7, 0')
    a('v_lshlrev_b32 v8, 3, v0')
    a('ds_write_b64 v8, v[6:7] offset:256')
    a('s_mul_i32 s40, s28, %d' % HW)
    a('s_add_u32 s40, s40, %d' % HB)
    a('v_and_b32 v8, 15, v2')
    a('v_lshlrev_b32 v9, 2, v8')
    a('v_add_u32 v9, s40, v9')
    a('ds_write_b32 v9, v6')
    a('ds_write_b32 v9, v6 offset:4160')
    a('v_lshrrev_b32 v9, 4, v2')
    AA, BA = 10, 14
    a('v_lshl_add_u32 v18, v9, 3, v8')
    a('v_and_b32 v19, 1, v8')
    a('v_sub_u32 v18, v18, v19')
    a('v_lshlrev_b32 v18, 1, v18')
    a('v_mul_u32_u24 v19, 4160, v19')
    a('v_sub_u32 v18, v18, v19')
    a('s_add_u32 s41, s40, %d' % (64 + 4160 - 28))
    a('v_add_u32 v%d, s41, v18' % AA)
    for i in range(1, 4):
        a('v_add_u32 v%d, %d, v%d' % (AA + i, 1024 * i, AA))
    a('v_lshlrev_b32 v18, 1, v8')
    a('v_sub_u32 v18, v18, v9')
    for b in range(4):
        a('v_add_u32 v19, %d, v18' % (4 * b + 1 + 4))
        a('v_lshrrev_b32 v20, 2, v19')
        a('v_add_u32 v20, 3, v20')
        a('v_xor_b32 v20, s28, v20')
        a('v_and_b32 v20, 3, v20')
        a('v_lshlrev_b32 v20, 4, v20')
        a('v_lshl_add_u32 v%d, v19, 6, v20' % (BA + b))
    a('v_lshlrev_b32 v18, 5, v8')
    a('v_lshl_add_u32 v18, v9, 3, v18')
    a('s_mul_i32 s41, s28, %d' % YP)
    a('s_add_u32 s41, s41, %d' % YB)
    a('v_add_u32 v18, s41, v18')
    a('v_bfe_u32 v19, v2, 2, 2')
    a('v_mul_u32_u24 v19, %d, v19' % YP)
    a('v_lshl_add_u32 v19, v9, 5, v19')
    a('v_and_b32 v20, 3, v2')
    a('v_lshl_add_u32 v19, v20, 3, v19')
    a('s_lshl_b32 s41, s28, 7')
    a('s_add_u32 s41, s41, %d' % YB)
    a('v_add_u32 v19, s41, v19')
    a('s_add_u32 s41, s40, 64')
    a('v_add_u32 v20, s41, v3')
    a('s_and_b32 s42, s29, 1')
    a('s_lshl_b32 s43, s33, 16')
    a('s_and_b32 s33, s33, 0xffff0000')
    a('s_cmp_eq_u32 s42, 0')
    a('s_cselect_b32 s33, s43, s33')
    a('v_lshlrev_b32 v21, 16, v%d' % HD)
    a('v_and_b32 v22, 0xffff0000, v%d' % HD)
    a('v_add_f32 v21, s33, v21')
    a('v_cmp_eq_u32 vcc, 0, v2')
    a('v_cvt_pk_bf16_f32 v21, v21, v22')
    a('v_cndmask_b32 v%d, v%d, v21, vcc' % (HD, HD))
    HO = 84
    for i in range(4):
        a('ds_write_b128 v20, %s offset:%d' % (vr(HD + 4 * i, 4), 1024 * i))
        for d in range(4):
            prev = HP + i if d == 0 else HD + 4 * i + d - 1
            a('v_alignbit_b32 v%d, v%d, v%d, 16' % (HO + 4 * i + d, HD + 4 * i + d, prev))
        a('ds_write_b128 v20, %s offset:%d' % (vr(HO + 4 * i, 4), 4160 + 1024 * i))
    a.wait_for(*dm)
    a.wait_all(vm=False)
    a('s_barrier')

    ACC = 96
    TMP = 24
    store = [('a', 32 * i) for i in range(8)] + [('v', 128 + 32 * i) for i in range(4)]
    where = {}
    for i in range(6):
        where[('A', i)] = store[i]
        where[('B', i)] = store[6 + i]
    where[('A', 6)] = where[('A', 3)]
    where[('B', 6)] = where[('B', 3)]
    where[('A', 7)] = where[('A', 4)]
    where[('B', 7)] = where[('B', 4)]

    def freg(kind, blk, rho, off=0, n=4):
        k, base = where[(kind, blk)]
        return vr(base + 4 * rho + off, n, k)

    def reads_of(kind, blk, rho):
        if kind == 'A':
            aa = 8 * blk + rho
            o = (aa & 15) * 16
            return ['ds_read2_b32 %s, v%d offset0:%d offset1:%d' % (freg(kind, blk, rho, 0, 2), AA + (aa >> 4), o, o + 1),
                    'ds_read2_b32 %s, v%d offset0:%d offset1:%d' % (freg(kind, blk, rho, 2, 2), AA + (aa >> 4), o + 2, o + 3)]
        beta = 8 * blk - rho
        return ['ds_read_b128 %s, v%d offset:%d' % (freg(kind, blk, rho), BA + (beta & 3), UB + 1024 * (beta >> 2) - 256)]

    mm = []
    for rho in range(8):
        for (al, ga) in [(0, 0), (0, 1), (0, 2), (1, 0), (1, 1), (1, 2), (2, 0), (2, 1), (2, 2)]:
            mm.append((al, ga, rho))
    for rho in range(8):
        for (al, ga) in [(0, 3), (1, 3), (3, 0), (3, 1)]:
            mm.append((al, ga, rho))
    for grp in [[(0, 4), (4, 0)], [(3, 2), (2, 3), (1, 4), (4, 1)], [(0, 5), (5, 0)],
                [(3, 3), (3, 4), (4, 3)], [(4, 2), (2, 4)], [(5, 1), (1, 5)], [(0, 6), (6, 0)],
                [(5, 2), (2, 5)], [(1, 6), (6, 1)], [(0, 7), (7, 0)]]:
        for rho in range(8):
            for (al, ga) in grp:
                mm.append((al, ga, rho))
    assert len(mm) == 288 and len(set(mm)) == 288
    lastuse = {}
    for i, (al, ga, rho) in enumerate(mm):
        lastuse[('A', al, rho)] = i
        lastuse[('B', ga, rho)] = i
    rs, seen = [], set()
    for i, (al, ga, rho) in enumerate(mm):
        for key in (('B', ga, rho), ('A', al, rho)):
            if key not in seen:
                seen.add(key)
                kind, blk, _ = key
                earliest = 0
                if blk >= 6:
                    earliest = lastuse[(kind, blk - 3, rho)] + 2
                for t in reads_of(*key):
                    rs.append((t, earliest, i))
    done_at = {}
    for i, (al, ga, rho) in enumerate(mm):
        done_at[al + ga] = i
    ev = {}
    ywr = {}

    def add(slot, fn):
        ev.setdefault(slot, []).append(fn)

    def ep_write(j):
        t = TMP + 2 * (j & 3)
        a('v_cvt_pk_bf16_f32 v%d, v%d, v%d' % (t, ACC + 4 * j, ACC + 4 * j + 1))
        a('v_cvt_pk_bf16_f32 v%d, v%d, v%d' % (t + 1, ACC + 4 * j + 2, ACC + 4 * j + 3))
        ywr[j] = a('ds_write_b64 v18, %s offset:%d' % (vr(t, 2), 4 * YP * j))

    def ep_barrier(js):
        a.wait_for(*[ywr[j] for j in js])
        a('s_barrier')

    def ep_read(j):
        a('ds_read_b64_tr_b16 %s, v19 offset:%d' % (vr(32 + 2 * (j & 3), 2), 4 * YP * j))

    def ep_gate(j, part):
        y, q = 32 + 2 * (j & 3), Q + 2 * j
        if part < 2:
            a('v_lshlrev_b32 v%d, 16, v%d' % (56 + 4 * part, y + part))
            a('v_and_b32 v%d, 0xffff0000, v%d' % (57 + 4 * part, y + part))
        elif part < 4:
            p = part - 2
            a('v_lshlrev_b32 v%d, 16, v%d' % (58 + 4 * p, q + p))
            a('v_and_b32 v%d, 0xffff0000, v%d' % (59 + 4 * p, q + p))
        elif part < 6:
            p = part - 4
            a('v_mul_f32 v%d, v%d, v%d' % (56 + 4 * p, 56 + 4 * p, 58 + 4 * p))
            a('v_mul_f32 v%d, v%d, v%d' % (57 + 4 * p, 57 + 4 * p, 59 + 4 * p))
        elif part == 6:
            a('v_cvt_pk_bf16_f32 v%d, v56, v57' % q)
            a('v_cvt_pk_bf16_f32 v%d, v60, v61' % (q + 1))
        else:
            a('s_add_u32 s35, s34, %d' % (256 * 2304 * j))
            a('buffer_store_dwordx2 %s, v5, s[36:39], s35 offen' % vr(q, 2))

    groups = [[0, 1, 2], [3], [4], [5], [6], [7]]
    busy = 0
    for js in groups:
        s0 = max(done_at[j] for j in js) + 8
        for k, j in enumerate(js):
            add(s0 + k, lambda j=j: ep_write(j))
        s1 = s0 + len(js) + 3
        add(s1, lambda js=js: ep_barrier(js))
        for k, j in enumerate(js):
            add(s1 + k, lambda j=j: ep_read(j))
        s2 = max(s1 + len(js) + 4, busy)
        for k, j in enumerate(js):
            for part in range(8):
                add(s2 + 8 * k + part, lambda j=j, part=part: ep_gate(j, part))
        busy = s2 + 8 * len(js)
    PRE = int(OPT.get('pre', 10))
    ri = 0
    for _ in range(PRE):
        a(rs[ri][0]); ri += 1
    started = set()
    for i, (al, ga, rho) in enumerate(mm):
        while ri < len(rs) and rs[ri][2] <= i:
            a(rs[ri][0]); ri += 1
        j = al + ga
        acc = vr(ACC + 4 * j, 4)
        a('%s %s, %s, %s, %s' % (mf, acc, freg('A', al, rho), freg('B', ga, rho), acc if j in started else '0'))
        started.add(j)
        if ri < len(rs) and rs[ri][1] <= i:
            a(rs[ri][0]); ri += 1
        for fn in ev.pop(i, []):
            fn()
    for s in sorted(ev):
        for fn in ev[s]:
            fn()
    a('s_endpgm')


def k2b(a):
    mf = 'v_mfma_f32_16x16x32_bf16'
    a('s_load_dwordx2 s[6:7], s[0:1], 88')
    a('s_load_dwordx2 s[12:13], s[0:1], 104')
    a('v_lshrrev_b32 v1, 6, v0')
    a('v_and_b32 v2, 63, v0')
    a('v_readfirstlane_b32 s28, v1')
    a('v_lshlrev_b32 v3, 4, v2')
    a('s_mul_i32 s29, s3, 73728')
    a('s_mul_i32 s30, s28, 9216')
    a('s_add_u32 s29, s29, s30')
    a.wait_all()
    a('s_add_u32 s12, s12, %d' % G_OFF)
    a('s_addc_u32 s13, s13, 0')
    srd(a, 16, 12, G_SIZE)
    dm = [[], []]
    for half in range(2):
        for grp in range(3):
            o = 36864 * half + 3072 * grp
            a('s_add_u32 m0, s30, %d' % o)
            a('s_add_u32 s31, s29, %d' % o)
            for i in range(3):
                dm[half].append(a('buffer_load_dwordx4 v3, s[16:19], s31 offen offset:%d lds' % (1024 * i)))
    srd(a, 20, 6, 2 * ARR)
    a('v_and_b32 v4, 15, v2')
    a('v_lshrrev_b32 v5, 4, v2')
    a('v_bfe_u32 v8, v2, 2, 2')
    a('v_lshl_add_u32 v6, v5, 3, v8')
    a('v_mul_u32_u24 v6, 576, v6')
    a('v_and_b32 v9, 3, v2')
    a('v_lshl_add_u32 v6, v9, 4, v6')
    a('v_and_b32 v10, 1, v5')
    a('v_lshl_add_u32 v6, v10, 3, v6')
    a('v_xor_b32 v7, 8, v6')
    CF, SF = 16, 32
    a('s_lshl_b32 s31, s28, 4')
    a('v_add_u32 v10, s31, v4')
    a('v_cvt_f32_u32 v10, v10')
    a('v_add_f32 v10, 0.5, v10')
    a('v_mul_f32 v10, 0x3c000000, v10')
    a('v_lshlrev_b32 v11, 3, v5')
    a('v_cvt_f32_u32 v11, v11')
    a('v_mul_f32 v11, v11, v10')
    for kap in range(4):
        for i in range(0, 8, 2):
            for q in range(2):
                mul = 32 * kap + i + q
                if mul == 0:
                    a('v_mov_b32 v%d, v11' % (12 + q))
                else:
                    a('s_mov_b32 s32, %s' % f2u(float(mul)))
                    a('v_fma_f32 v%d, s32, v10, v11' % (12 + q))
            a('v_cos_f32 v48, v12')
            a('v_cos_f32 v49, v13')
            a('v_sin_f32 v50, v12')
            a('v_sin_f32 v51, v13')
            a('v_cvt_pk_bf16_f32 v%d, v48, v49' % (CF + 4 * kap + i // 2))
            a('v_cvt_pk_bf16_f32 v%d, v50, v51' % (SF + 4 * kap + i // 2))
    a('s_mul_i32 s33, s3, 57')
    a('s_lshr_b32 s33, s33, 9')
    a('s_mul_i32 s34, s33, 9')
    a('s_sub_u32 s34, s3, s34')
    a('s_lshl_b32 s35, s33, 2')
    a('v_add_u32 v12, s35, v8')
    a('s_lshl_b32 s35, s28, 8')
    a('v_lshl_add_u32 v13, v5, 6, s35')
    a('v_add_u32 v14, v12, v13')
    a('v_sub_u32 v15, v12, v13')
    a('v_add_u32 v15, %d, v15' % (16 * 127))
    a('s_lshl_b32 s35, s34, 6')
    a('s_add_u32 s36, s35, 1152')
    a('v_lshl_add_u32 v48, v9, 4, s36')
    a('s_sub_u32 s36, %d, s35' % (2304 - 16))
    a('v_lshlrev_b32 v49, 4, v9')
    a('v_sub_u32 v49, s36, v49')
    a('s_movk_i32 s37, 2304')
    AD = 52
    for i in range(4):
        for sg in range(2):
            a('v_add_u32 v50, %d, v%d' % (16 * i if sg == 0 else -16 * i, 14 + sg))
            a('v_mad_u32_u24 v%d, v50, s37, v48' % (AD + 4 * i + 2 * sg))
            a('v_sub_u32 v50, 2048, v50')
            a('v_and_b32 v50, 2047, v50')
            a('v_mad_u32_u24 v%d, v50, s37, v49' % (AD + 4 * i + 2 * sg + 1))
    PA, QA, FB = 68, 104, 140
    NB = 8
    items = [(kap, tau, part) for kap in range(4) for tau in range(9) for part in range(2)]

    def rd(n):
        kap, tau, part = items[n]
        f = FB + 4 * (n % NB)
        for h in range(2):
            a('ds_read_b64_tr_b16 %s, v%d offset:%d' % (vr(f + 2 * h, 2), 6 + part, kap * 18432 + h * 2304 + tau * 64))

    LA = 6
    nxt = 0
    for half in range(2):
        a.wait_for(*dm[half])
        a('s_barrier')
        lo, hi = 36 * half, 36 * half + 36
        for n in range(lo, hi):
            while nxt < min(hi, n + LA + 1):
                rd(nxt); nxt += 1
            kap, tau, part = items[n]
            acc = vr((QA if part else PA) + 4 * tau, 4)
            a('%s %s, %s, %s, %s' % (mf, acc, vr((SF if part else CF) + 4 * kap, 4), vr(FB + 4 * (n % NB), 4), acc if kap else '0'))
    YT, ST = 172, 192
    k = 0
    for i in range(4):
        for sg in range(2):
            y = YT + 10 * sg
            for tau in range(9):
                a('%s v%d, v%d, v%d' % ('v_sub_f32' if sg else 'v_add_f32', y + tau, PA + 4 * tau + i, QA + 4 * tau + i))
            st = ST + 8 * (k % 4)
            for d in range(4):
                a('v_cvt_pk_bf16_f32 v%d, v%d, v%d' % (st + d, y + 2 * d, y + 2 * d + 1))
            a('buffer_store_dwordx4 %s, v%d, s[20:23], 0 offen' % (vr(st, 4), AD + 4 * i + 2 * sg))
            for d in range(4):
                a('v_cvt_pk_bf16_f32 v%d, v%d, v%d' % (st + 4 + d, y + 8 - 2 * d, y + 7 - 2 * d))
            a('buffer_store_dwordx4 %s, v%d, s[20:23], 0 offen' % (vr(st + 4, 4), AD + 4 * i + 2 * sg + 1))
            k += 1
    a('s_endpgm')


def kd(a, name, vgpr, accum, sgpr=64):
    a.raw('.p2align 6')
    a.raw('.amdhsa_kernel ' + name)
    a.raw('  .amdhsa_next_free_vgpr %d' % vgpr)
    a.raw('  .amdhsa_next_free_sgpr %d' % sgpr)
    a.raw('  .amdhsa_accum_offset %d' % accum)
    a.raw('  .amdhsa_group_segment_fixed_size 0')
    a.raw('  .amdhsa_kernarg_size 112')
    a.raw('  .amdhsa_user_sgpr_count 2')
    a.raw('  .amdhsa_user_sgpr_kernarg_segment_ptr 1')
    a.raw('  .amdhsa_system_sgpr_workgroup_id_x 1')
    a.raw('.end_amdhsa_kernel')


def main():
    a = Asm()
    ref = open('cdna_kernels/%s.s.ref' % NAME).read().splitlines()
    for l in ref:
        if l.startswith(';   offset') or l.startswith('; Kernarg'):
            a.raw(l)
    a.raw('; @launch kernel=k1_kernel grid=(272,1,1) block=(256,1,1) lds=55424')
    a.raw('; @launch kernel=k2_kernel grid=(184,1,1) block=(256,1,1) lds=73728')
    a.raw('.amdgcn_target "amdgcn-amd-amdhsa--gfx950"')
    a.raw('.text')
    a.raw('.globl k1_kernel')
    a.raw('.p2align 8')
    a.raw('.type k1_kernel,@function')
    a.label('k1_kernel')
    a('s_cmp_lt_u32 s2, 128')
    a('s_cbranch_scc1 L_k1b')
    a('s_cmp_ge_u32 s2, 272')
    a('s_cbranch_scc1 L_k1_exit')
    k1a(a)
    a.label('L_k1_exit')
    a('s_endpgm')
    a.reset_state()
    a.raw('.p2align 6')
    a.label('L_k1b')
    k1b(a)
    a.reset_state()
    a.raw('.globl k2_kernel')
    a.raw('.p2align 8')
    a.raw('.type k2_kernel,@function')
    a.label('k2_kernel')
    a('s_cmp_ge_u32 s2, 144')
    a('s_cbranch_scc1 L_k2b')
    a('s_and_b32 s4, s2, 7')
    a('s_lshr_b32 s5, s2, 3')
    a('s_lshl_b32 s3, s4, 4')
    a('s_add_u32 s3, s3, s5')
    a('s_lshl_b32 s4, s4, 1')
    a('s_add_u32 s4, s4, s5')
    a('s_add_u32 s4, s4, 112')
    a('s_cmp_lt_u32 s5, 16')
    a('s_cselect_b32 s3, s3, s4')
    k2a(a)
    a.reset_state()
    a.raw('.p2align 6')
    a.label('L_k2b')
    a('s_sub_u32 s3, s2, 144')
    a('s_cmp_ge_u32 s3, 36')
    a('s_cbranch_scc1 L_k2_exit')
    k2b(a)
    a.label('L_k2_exit')
    a('s_endpgm')
    a.raw('.section .rodata,"a"')
    kd(a, 'k1_kernel', 256, 256)
    kd(a, 'k2_kernel', 512, 256)
    out = sys.argv[1] if len(sys.argv) > 1 else 'cdna_kernels/%s.s' % NAME
    open(out, 'w').write(a.text())
    print('wrote', out, 'lines', len(a.out), 'auto nops', a.nops)


main()
```

```python
import math, sys
from asmlib import Asm, vr, f2u

NAME = 'concat_heads__ssm_conv_h3__spectral_fnet__prompt'
ARR = 2359296
G_OFF = ARR
G_SIZE = 36 * 128 * 576
PITCHG = 4640

OPT = dict(a.split('=') for a in sys.argv[2:] if '=' in a)


def srd(a, d, base, size):
    a('s_mov_b32 s%d, s%d' % (d, base))
    a('s_and_b32 s%d, s%d, 0xffff' % (d + 1, base + 1))
    a('s_mov_b32 s%d, %d' % (d + 2, size))
    a('s_mov_b32 s%d, 0x20000' % (d + 3))


def k1a(a):
    a.comment('---- K1/A: kv product, transposed into ws ----')
    a('s_load_dwordx4 s[4:7], s[0:1], 8')
    a('s_load_dwordx2 s[8:9], s[0:1], 24')
    a('s_load_dwordx2 s[10:11], s[0:1], 104')
    a('v_lshrrev_b32 v1, 6, v0')
    a('v_and_b32 v2, 63, v0')
    a('v_readfirstlane_b32 s28, v1')
    a('s_sub_u32 s3, s2, 128')
    a('s_and_b32 s29, s3, 7')
    a('s_lshr_b32 s30, s3, 3')
    a('s_lshl_b32 s31, s29, 1')
    a('s_add_u32 s31, s31, s30')
    a('s_sub_u32 s31, s31, 16')
    a('s_cmp_lt_u32 s30, 16')
    a('s_cselect_b32 s29, s29, 8')
    a('s_cselect_b32 s30, s30, s31')
    a('s_lshl_b32 s31, s30, 2')
    a('s_add_u32 s31, s31, s28')
    a('s_mul_i32 s32, s31, %d' % (32 * 1152))
    a('s_lshl_b32 s33, s29, 7')
    a('s_add_u32 s32, s32, s33')
    a('s_sub_u32 s32, s32, %d' % (4 * 1152))
    a('v_lshrrev_b32 v3, 3, v2')
    a('v_and_b32 v4, 7, v2')
    a('v_mul_u32_u24 v3, 1152, v3')
    a('v_lshl_add_u32 v3, v4, 4, v3')
    a('v_add_u32 v3, s32, v3')
    a('v_add_u32 v4, 9216, v3')
    a('v_add_u32 v5, 4608, v3')
    a('s_mul_i32 s34, s28, 9216')
    a('s_mov_b32 s35, 9216')
    a('s_mov_b32 s36, 18432')
    a('s_mov_b32 s37, 27648')
    srd(a, 12, 4, ARR)
    srd(a, 16, 6, ARR)
    so = ['0', 's35', 's36', 's37']
    dm = []
    a('s_mov_b32 m0, s34')
    dm.append(a('buffer_load_dwordx4 v3, s[12:15], 0 offen lds'))
    for i in range(1, 4):
        a('s_add_u32 m0, s34, %d' % (1024 * i))
        dm.append(a('buffer_load_dwordx4 v4, s[12:15], %s offen lds' % so[i - 1]))
    a('s_add_u32 m0, s34, 4096')
    a('s_mov_b32 exec_hi, 0')
    dm.append(a('buffer_load_dwordx4 v4, s[12:15], s37 offen lds'))
    a('s_mov_b32 exec_hi, -1')
    for i in range(4):
        a('s_add_u32 m0, s34, %d' % (5120 + 1024 * i))
        dm.append(a('buffer_load_dwordx4 v5, s[16:19], %s offen lds' % so[i]))
    srd(a, 24, 8, 4608)
    a('s_lshl_b32 s33, s29, 9')
    a('v_lshlrev_b32 v6, 3, v2')
    a('buffer_load_dwordx2 v[8:9], v6, s[24:27], s33 offen')
    srd(a, 20, 10, ARR)
    a('v_bfe_u32 v6, v2, 2, 2')
    a('v_lshlrev_b32 v6, 7, v6')
    a('v_lshrrev_b32 v7, 4, v2')
    a('v_lshl_add_u32 v6, v7, 5, v6')
    a('v_and_b32 v7, 3, v2')
    a('v_lshl_add_u32 v6, v7, 3, v6')
    a('v_add_u32 v6, s34, v6')
    a('v_xor_b32 v7, s28, v7')
    a('v_lshlrev_b32 v7, 4, v7')
    a('v_lshrrev_b32 v10, 2, v2')
    a('v_lshl_add_u32 v7, v10, 14, v7')
    a('s_lshl_b32 s38, s29, 18')
    a('s_lshl_b32 s39, s31, 8')
    a('s_add_u32 s38, s38, s39')
    a('s_mov_b32 s40, 0xffff')
    a('v_and_b32 v10, 0xffff0000, v9')
    a('v_bfi_b32 v11, s40, v9, v8')
    a('v_and_b32 v12, 0xffff, v8')
    a('v_alignbit_b32 v13, v9, v9, 16')
    a('v_alignbit_b32 v14, v8, v8, 16')
    a.wait_for(*dm)
    K, V = 16, 34
    for i in range(9):
        a('ds_read_b64_tr_b16 %s, v6 offset:%d' % (vr(K + 2 * i, 2), 512 * i))
        if i < 8:
            a('ds_read_b64_tr_b16 %s, v6 offset:%d' % (vr(V + 2 * i, 2), 5120 + 512 * i))
    E, U, OUT = 50, 58, 68
    for i in range(4):
        ms = [4 * i + d for d in range(4)]
        for d, m in enumerate(ms):
            a('v_dot2_f32_bf16 v%d, v%d, v10, 0' % (E + 2 * d, K + m))
            a('v_dot2_f32_bf16 v%d, v%d, v13, 0' % (E + 2 * d + 1, K + m + 1))
        for d, m in enumerate(ms):
            a('v_dot2_f32_bf16 v%d, v%d, v11, v%d' % (E + 2 * d, K + m + 1, E + 2 * d))
            a('v_dot2_f32_bf16 v%d, v%d, v14, v%d' % (E + 2 * d + 1, K + m + 2, E + 2 * d + 1))
        for d, m in enumerate(ms):
            a('v_dot2_f32_bf16 v%d, v%d, v12, v%d' % (E + 2 * d, K + m + 2, E + 2 * d))
        for d, m in enumerate(ms):
            a('v_lshlrev_b32 v%d, 16, v%d' % (U + 2 * d, V + m))
            a('v_and_b32 v%d, 0xffff0000, v%d' % (U + 2 * d + 1, V + m))
        for d, m in enumerate(ms):
            a('v_pk_mul_f32 %s, %s, %s' % (vr(U + 2 * d, 2), vr(E + 2 * d, 2), vr(U + 2 * d, 2)))
        for d, m in enumerate(ms):
            a('v_cvt_pk_bf16_f32 v%d, v%d, v%d' % (OUT + 4 * i + 3 - d, U + 2 * d + 1, U + 2 * d))
        a('buffer_store_dwordx4 %s, v7, s[20:23], s38 offen offset:%d' % (vr(OUT + 4 * i, 4), 64 * i))
    a('s_endpgm')


def k1b(a):
    UU, TT = 18432, 36864
    a('s_load_dwordx2 s[4:5], s[0:1], 48')
    a('s_load_dwordx2 s[10:11], s[0:1], 104')
    a('v_lshrrev_b32 v1, 6, v0')
    a('v_and_b32 v2, 63, v0')
    a('v_readfirstlane_b32 s28, v1')
    a('v_lshlrev_b32 v3, 4, v2')
    a('v_add_u32 v7, 146304, v3')
    a('v_cmp_le_u32 vcc, 8, v2')
    a('v_cmp_le_u32 s[30:31], 16, v2')
    a('v_cmp_le_u32 s[32:33], 24, v2')
    a('v_cndmask_b32 v4, v3, v7, vcc')
    a('v_cndmask_b32 v5, v3, v7, s[30:31]')
    a('v_cndmask_b32 v6, v3, v7, s[32:33]')
    a('s_lshl_b32 s29, s28, 9')
    a('s_add_u32 s29, s29, s2')
    a('s_mul_i32 s29, s29, 1152')
    a('s_add_u32 s34, s29, 1024')
    a('s_add_u32 s35, s29, %d' % (2048 + 146304))
    a('s_add_u32 s36, s29, %d' % (3072 + 2 * 146304))
    a('s_add_u32 s37, s29, %d' % (4096 + 3 * 146304))
    a('s_mul_i32 s38, s28, 4608')
    srd(a, 12, 4, ARR)
    dm = []
    for k, (vo, so) in enumerate([(3, 29), (4, 34), (5, 35), (6, 36), (3, 37)]):
        a('s_add_u32 m0, s38, %d' % (1024 * k))
        if k == 4:
            a('s_mov_b32 exec_hi, 0')
        dm.append(a('buffer_load_dwordx4 v%d, s[12:15], s%d offen lds' % (vo, so)))
    a('s_mov_b32 exec_hi, -1')
    a('s_add_u32 s10, s10, %d' % G_OFF)
    a('s_addc_u32 s11, s11, 0')
    srd(a, 16, 10, G_SIZE)
    a('v_and_b32 v3, 15, v2')
    a('v_lshrrev_b32 v4, 4, v2')
    XA = 8
    a('v_mul_u32_u24 v5, 5, v3')
    a('v_mul_u32_u24 v6, 57, v5')
    a('v_lshrrev_b32 v6, 9, v6')
    a('v_mul_u32_u24 v6, 9, v6')
    a('v_sub_u32 v5, v5, v6')
    a('v_mul_u32_u24 v6, 1152, v4')
    a('v_lshl_add_u32 v6, v3, 3, v6')
    a('v_add_u32 v6, s38, v6')
    a('v_lshl_add_u32 v%d, v5, 7, v6' % XA)
    a('v_add_u32 v7, 1024, v6')
    for j in range(1, 9):
        a('v_cmp_eq_u32 vcc, v%d, v7' % (XA + j - 1))
        a('v_add_u32 v%d, 128, v%d' % (XA + j, XA + j - 1))
        a('v_cndmask_b32 v%d, v%d, v6, vcc' % (XA + j, XA + j))
    a('s_lshl_b32 s39, s28, 2')
    a('v_add_u32 v5, s39, v4')
    a('v_lshrrev_b32 v6, 1, v5')
    a('v_lshrrev_b32 v7, 1, v3')
    a('v_xor_b32 v6, v6, v7')
    a('v_lshlrev_b32 v6, 4, v6')
    a('v_lshl_add_u32 v6, v5, 7, v6')
    a('v_and_b32 v7, 1, v3')
    a('v_lshl_add_u32 v6, v7, 3, v6')
    a('v_add_u32 v17, %d, v6' % UU)
    a('v_lshrrev_b32 v6, 1, v3')
    a('v_xor_b32 v6, v6, v4')
    a('v_lshlrev_b32 v6, 4, v6')
    a('v_lshl_add_u32 v6, v3, 7, v6')
    a('v_add_u32 v18, %d, v6' % UU)
    a('v_xor_b32 v19, 64, v18')
    a('s_lshl_b32 s39, s28, 4')
    a('v_add_u32 v5, s39, v3')
    a('v_mul_u32_u24 v6, 9, v5')
    a('v_mul_u32_u24 v7, %d, v4' % PITCHG)
    a('v_add_u32 v7, %d, v7' % TT)
    a('s_mov_b32 s40, 0x80008000')
    a('v_mov_b32 v31, s40')
    for p in range(5):
        if p:
            a('v_add_u32 v30, %d, v6' % (64 * p))
            a('v_subrev_u32 v32, 576, v30')
            a('v_min_u32 v30, v30, v32')
        else:
            a('v_mov_b32 v30, v6')
        a('v_sub_u32 v32, 576, v30')
        a('v_cmp_lt_u32 vcc, v32, v30')
        a('v_min_u32 v30, v30, v32')
        a('v_lshl_add_u32 v%d, v30, 4, v7' % (20 + p))
        a('v_cndmask_b32 v%d, 0, v31, vcc' % (25 + p))
    a('s_lshl_b32 s39, s28, 2')
    a('v_add_u32 v30, s39, v4')
    a('v_and_b32 v44, 3, v2')
    a('v_bfe_u32 v45, v2, 2, 2')
    a('v_mul_u32_u24 v46, %d, v44' % PITCHG)
    a('v_lshl_add_u32 v46, v45, 7, v46')
    a('v_add_u32 v46, %d, v46' % TT)
    a('s_mov_b32 s41, %d' % (9 * 73728))
    a('v_mul_lo_u32 v47, v45, s41')
    a('v_lshl_add_u32 v47, v44, 4, v47')
    a('s_mul_i32 s42, s2, 576')
    a('s_mov_b32 s43, %d' % (73728 - 576))
    for k in range(6):
        a('v_add_u32 v48, %d, v30' % (16 * k))
        if k == 5:
            a('v_cmp_lt_u32 vcc, 80, v48')
            a('v_min_u32 v48, 80, v48')
        a('v_mul_u32_u24 v49, 57, v48')
        a('v_lshrrev_b32 v49, 9, v49')
        a('v_mad_u32_u24 v50, v49, 23, v48')
        a('v_lshl_add_u32 v%d, v50, 4, v46' % (32 + k))
        a('v_lshl_add_u32 v50, v48, 6, v47')
        a('v_mad_u32_u24 v%d, v49, s43, v50' % (38 + k))
        if k == 5:
            a('v_cndmask_b32 v43, v43, v31, vcc')
    CF, SF, NF = 52, 60, 68
    a('v_cvt_f32_u32 v76, v5')
    a('v_mul_f32 v76, 0x3c800000, v76')
    a('v_lshlrev_b32 v77, 3, v4')
    a('v_cvt_f32_u32 v77, v77')
    a('v_mul_f32 v77, v77, v76')
    for kap in range(2):
        for i in range(0, 8, 2):
            for q in range(2):
                mul = 32 * kap + i + q
                if mul == 0:
                    a('v_mov_b32 v%d, v77' % (78 + q))
                else:
                    a('s_mov_b32 s44, %s' % f2u(float(mul)))
                    a('v_fma_f32 v%d, s44, v76, v77' % (78 + q))
            a('v_cos_f32 v80, v78')
            a('v_cos_f32 v81, v79')
            a('v_sin_f32 v82, v78')
            a('v_sin_f32 v83, v79')
            a('v_cvt_pk_bf16_f32 v%d, v80, v81' % (CF + 4 * kap + i // 2))
            a('v_cvt_pk_bf16_f32 v%d, v82, v83' % (SF + 4 * kap + i // 2))
            a('v_xor_b32 v%d, s40, v%d' % (NF + 4 * kap + i // 2, SF + 4 * kap + i // 2))
    A1, A2 = 84, 88
    a('v_cvt_f32_u32 v76, v3')
    a('v_cvt_f32_u32 v77, s2')
    a('v_add_f32 v78, -4.0, v76')
    a('v_add_f32 v78, -4.0, v78')
    a('v_mul_f32 v77, v77, v78')
    a('v_mul_f32 v77, 0x3a000000, v77')
    a('v_mul_f32 v76, 0x3d800000, v76')
    a('v_lshlrev_b32 v78, 2, v4')
    a('v_cvt_f32_u32 v78, v78')
    a('v_fma_f32 v92, v78, v76, v77')
    a('v_add_f32 v93, v92, v76')
    a('v_add_f32 v94, v93, v76')
    a('v_add_f32 v95, v94, v76')
    for i in range(4):
        a('v_cos_f32 v%d, v%d' % (96 + i, 92 + i))
        a('v_sin_f32 v%d, v%d' % (100 + i, 92 + i))
    a('v_cvt_pk_bf16_f32 v92, v96, v97')
    a('v_cvt_pk_bf16_f32 v93, v98, v99')
    a('v_cvt_pk_bf16_f32 v94, v100, v101')
    a('v_cvt_pk_bf16_f32 v95, v102, v103')
    a('v_xor_b32 v96, s40, v94')
    a('v_xor_b32 v97, s40, v95')
    a('s_bitcmp1_b32 s2, 3')
    a('s_cselect_b64 vcc, -1, 0')
    re_f, im_f = [92, 93, 94, 95], [96, 97, 92, 93]
    for i in range(4):
        a('v_cndmask_b32 v%d, v%d, v%d, vcc' % (A1 + i, re_f[i], im_f[i]))
        a('v_cndmask_b32 v%d, v%d, v%d, vcc' % (A2 + i, im_f[i], re_f[i]))
    c = [math.cos(2 * math.pi * k / 9) for k in range(5)]
    s = [math.sin(2 * math.pi * k / 9) for k in range(5)]
    cs = {'c1': (46, c[1]), 'c2': (47, c[2]), 'c4': (48, c[4]), 'h': (49, -0.5),
          's1': (50, s[1]), 's2': (51, s[2]), 's3': (52, s[3]), 's4': (53, s[4])}
    for r, val in cs.values():
        a('s_mov_b32 s%d, %s' % (r, f2u(val)))

    def cst(nm):
        r = cs[nm][0]
        return 's[%d:%d]' % (r & ~1, (r & ~1) + 1), r & 1

    def pfma(d, x, nm, acc, negc=False, nega=False):
        sp, hi = cst(nm)
        t = 'v_pk_fma_f32 %s, %s, %s, %s op_sel:[0,%d,0] op_sel_hi:[1,%d,1]' % (vr(d, 2), vr(x, 2), sp, vr(acc, 2), hi, hi)
        if negc or nega:
            t += ' neg_lo:[0,%d,%d] neg_hi:[0,%d,%d]' % (negc, nega, negc, nega)
        a(t)

    def pmul(d, x, nm, negc=False):
        sp, hi = cst(nm)
        t = 'v_pk_mul_f32 %s, %s, %s op_sel:[0,%d] op_sel_hi:[1,%d]' % (vr(d, 2), vr(x, 2), sp, hi, hi)
        if negc:
            t += ' neg_lo:[0,1] neg_hi:[0,1]'
        a(t)

    def padd(d, x, y, neg=False):
        a('v_pk_add_f32 %s, %s, %s%s' % (vr(d, 2), vr(x, 2), vr(y, 2), ' neg_lo:[0,1] neg_hi:[0,1]' if neg else ''))

    a.wait_for(*dm)
    XR = 104
    for j in range(9):
        a('ds_read_b64 %s, v%d' % (vr(XR + 2 * j, 2), XA + j))
    Z, AB, OU, PK = 122, 140, 156, 182
    for sg in range(2):
        for j in range(9):
            a('v_lshlrev_b32 v%d, 16, v%d' % (Z + 2 * ((j + 2 * sg) % 9), XR + 2 * j + sg))
            a('v_and_b32 v%d, 0xffff0000, v%d' % (Z + 2 * ((j + 2 * sg + 1) % 9) + 1, XR + 2 * j + sg))
        z = lambda k: Z + 2 * k
        A = lambda j: AB + 2 * (j - 1)
        B = lambda j: AB + 8 + 2 * (j - 1)
        o = lambda cidx: OU + 2 * cidx
        M, N, T, W = OU + 18, OU + 20, OU + 22, OU + 24
        for j in range(1, 5):
            padd(A(j), z(j), z(9 - j))
            padd(B(j), z(j), z(9 - j), neg=True)
        pfma(M, A(3), 'h', z(0))
        padd(N, z(0), A(3))
        padd(T, A(1), A(2))
        pmul(W, B(3), 's3', negc=True)
        pfma(o(1), A(1), 'c1', M)
        pfma(o(3), A(1), 'c2', M)
        pfma(o(7), A(1), 'c4', M)
        padd(T, T, A(4))
        pfma(o(2), B(1), 's1', W, negc=True)
        pfma(o(4), B(1), 's2', W, negc=True, nega=True)
        pfma(o(8), B(1), 's4', W, negc=True)
        padd(o(6), B(1), B(2), neg=True)
        pfma(o(1), A(2), 'c2', o(1))
        pfma(o(3), A(2), 'c4', o(3))
        pfma(o(7), A(2), 'c1', o(7))
        padd(o(0), N, T)
        pfma(o(2), B(2), 's2', o(2), negc=True)
        pfma(o(4), B(2), 's4', o(4), negc=True)
        pfma(o(8), B(2), 's1', o(8))
        padd(o(6), o(6), B(4))
        pfma(o(5), T, 'h', N)
        pfma(o(1), A(4), 'c4', o(1))
        pfma(o(3), A(4), 'c1', o(3))
        pfma(o(7), A(4), 'c2', o(7))
        pfma(o(2), B(4), 's4', o(2), negc=True)
        pfma(o(4), B(4), 's1', o(4))
        pfma(o(8), B(4), 's2', o(8))
        pmul(o(6), o(6), 's3', negc=True)
        for cidx in (0, 5, 1, 3, 7, 2, 4, 8, 6):
            a('v_cvt_pk_bf16_f32 v%d, v%d, v%d' % (PK + 2 * cidx + sg, o(cidx), o(cidx) + 1))
            if sg == 1:
                a('ds_write_b64 v17, %s offset:%d' % (vr(PK + 2 * cidx, 2), 2048 * cidx))
    a.wait_all(vm=False)
    a('s_barrier')
    UF = 104
    uf = lambda cidx, kap: vr(UF + 8 * cidx + 4 * kap, 4)
    for cidx in range(9):
        for kap in range(2):
            a('ds_read_b128 %s, v%d offset:%d' % (uf(cidx, kap), 18 + kap, 2048 * cidx))
    ZA = 176
    BF = 216
    GA = 236
    mf = 'v_mfma_f32_16x16x32_bf16'

    def h2(p):
        zr, zi = vr(ZA + 8 * p, 4), vr(ZA + 8 * p + 4, 4)
        if p == 0:
            seq = [(zr, 0, 0, CF), (zi, 0, 0, NF), (zr, 0, 1, CF), (zi, 0, 1, NF)]
        else:
            cr, ci = 2 * p - 1, 2 * p
            seq = [(zr, cr, 0, CF), (zi, cr, 0, NF), (zr, cr, 1, CF), (zi, cr, 1, NF),
                   (zr, ci, 0, SF), (zi, ci, 0, CF), (zr, ci, 1, SF), (zi, ci, 1, CF)]
        seen = set()
        for d, cidx, kap, cf in seq:
            a('%s %s, %s, %s, %s' % (mf, d, uf(cidx, kap), vr(cf + 4 * kap, 4), d if d in seen else '0'))
            seen.add(d)

    def pack(p):
        zz = ZA + 8 * p
        for i in range(4):
            a('v_cvt_pk_bf16_f32 v%d, v%d, v%d' % (BF + 4 * p + i, zz + 2 * i, zz + 2 * i + 1))
        a('v_xor_b32 v%d, v%d, v%d' % (BF + 4 * p + 2, 25 + p, BF + 4 * p + 2))
        a('v_xor_b32 v%d, v%d, v%d' % (BF + 4 * p + 3, 25 + p, BF + 4 * p + 3))

    def seqst(p):
        g = GA + 8 * (p & 1)
        a('%s %s, %s, %s, 0' % (mf, vr(g, 4), vr(A1, 4), vr(BF + 4 * p, 4)))
        a('%s %s, %s, %s, 0' % (mf, vr(g + 4, 4), vr(A2, 4), vr(BF + 4 * p, 4)))

    def fin(p):
        g = GA + 8 * (p & 1)
        for i in range(4):
            a('v_cvt_pk_bf16_f32 v%d, v%d, v%d' % (ZA + 8 * p + i, g + 2 * i, g + 2 * i + 1))
        a('ds_write_b128 v%d, %s' % (20 + p, vr(ZA + 8 * p, 4)))

    h2(0); h2(1); pack(0); seqst(0)
    h2(2); pack(1); fin(0); seqst(1)
    h2(3); pack(2); fin(1); seqst(2)
    h2(4); pack(3); fin(2); seqst(3)
    pack(4); seqst(4); fin(3); fin(4)
    a.wait_all(vm=False)
    a('s_barrier')
    RB = 104
    for k in range(6):
        a('ds_read_b64_tr_b16 %s, v%d' % (vr(RB + 4 * k, 2), 32 + k))
        a('ds_read_b64_tr_b16 %s, v%d offset:8' % (vr(RB + 4 * k + 2, 2), 32 + k))
    for k in range(6):
        a('buffer_store_dwordx4 %s, v%d, s[16:19], s42 offen' % (vr(RB + 4 * k, 4), 38 + k))
    a('s_endpgm')


def k2a(a):
    UB, HB, YB = 2304, 18688, 51968
    HW, YP = 8320, 576
    mf = 'v_mfma_f32_16x16x32_bf16'
    a('s_load_dwordx2 s[4:5], s[0:1], 0')
    a('s_load_dwordx4 s[8:11], s[0:1], 32')
    a('s_load_dwordx2 s[6:7], s[0:1], 88')
    a('s_load_dwordx2 s[12:13], s[0:1], 104')
    a('v_lshrrev_b32 v1, 6, v0')
    a('v_and_b32 v2, 63, v0')
    a('v_readfirstlane_b32 s28, v1')
    a('v_lshlrev_b32 v3, 4, v2')
    a('v_add_u32 v4, -4, v3')
    a('s_lshl_b32 s29, s3, 2')
    a('s_add_u32 s29, s29, s28')
    a('s_lshl_b32 s30, s29, 12')
    a('s_lshl_b32 s31, s28, 12')
    a('s_add_u32 s31, s31, %d' % UB)
    a('s_lshr_b32 s32, s29, 1')
    a('s_lshl_b32 s32, s32, 2')
    a.wait_all()
    a('s_load_dword s33, s[10:11], s32')
    a('s_add_u32 s8, s8, s30')
    a('s_addc_u32 s9, s9, 0')
    srd(a, 16, 8, 4096)
    srd(a, 20, 12, ARR)
    HD, HP = 64, 80
    hl = []
    for i in range(4):
        hl.append(a('buffer_load_dwordx4 %s, v3, s[16:19], 0 offen offset:%d' % (vr(HD + 4 * i, 4), 1024 * i)))
        if i == 0:
            hl.append(a('buffer_load_dword v%d, v4, s[16:19], 0 offen' % HP))
        else:
            hl.append(a('buffer_load_dword v%d, v3, s[16:19], 0 offen offset:%d' % (HP + i, 1024 * i - 4)))
    a('s_mov_b32 m0, s31')
    dm = []
    for i in range(4):
        dm.append(a('buffer_load_dwordx4 v3, s[20:23], s30 offen offset:%d lds' % (1024 * i)))
    srd(a, 24, 4, ARR)
    Q = 40
    a('v_mul_u32_u24 v5, 1152, v0')
    a('s_lshl_b32 s34, s3, 3')
    ql = []
    for j in range(8):
        a('s_add_u32 s35, s34, %d' % (256 * 1152 * j))
        ql.append(a('buffer_load_dwordx2 %s, v5, s[24:27], s35 offen' % vr(Q + 2 * j, 2)))
    srd(a, 36, 6, 2 * ARR)
    a('v_lshlrev_b32 v5, 1, v5')
    a('v_mov_b32 v6, 0')
    a('v_mov_b32 v7, 0')
    a('v_lshlrev_b32 v8, 3, v0')
    a('ds_write_b64 v8, v[6:7] offset:256')
    a('s_mul_i32 s40, s28, %d' % HW)
    a('s_add_u32 s40, s40, %d' % HB)
    a('v_and_b32 v8, 15, v2')
    a('v_lshlrev_b32 v9, 2, v8')
    a('v_add_u32 v9, s40, v9')
    a('ds_write_b32 v9, v6')
    a('ds_write_b32 v9, v6 offset:4160')
    a('v_lshrrev_b32 v9, 4, v2')
    AA, BA = 10, 14
    a('v_lshl_add_u32 v18, v9, 3, v8')
    a('v_and_b32 v19, 1, v8')
    a('v_sub_u32 v18, v18, v19')
    a('v_lshlrev_b32 v18, 1, v18')
    a('v_mul_u32_u24 v19, 4160, v19')
    a('v_sub_u32 v18, v18, v19')
    a('s_add_u32 s41, s40, %d' % (64 + 4160 - 28))
    a('v_add_u32 v%d, s41, v18' % AA)
    for i in range(1, 4):
        a('v_add_u32 v%d, %d, v%d' % (AA + i, 1024 * i, AA))
    a('v_lshlrev_b32 v18, 1, v8')
    a('v_sub_u32 v18, v18, v9')
    for b in range(4):
        a('v_add_u32 v19, %d, v18' % (4 * b + 1 + 4))
        a('v_lshrrev_b32 v20, 2, v19')
        a('v_add_u32 v20, 3, v20')
        a('v_xor_b32 v20, s28, v20')
        a('v_and_b32 v20, 3, v20')
        a('v_lshlrev_b32 v20, 4, v20')
        a('v_lshl_add_u32 v%d, v19, 6, v20' % (BA + b))
    a('v_lshlrev_b32 v18, 5, v8')
    a('v_lshl_add_u32 v18, v9, 3, v18')
    a('s_mul_i32 s41, s28, %d' % YP)
    a('s_add_u32 s41, s41, %d' % YB)
    a('v_add_u32 v18, s41, v18')
    a('v_bfe_u32 v19, v2, 2, 2')
    a('v_mul_u32_u24 v19, %d, v19' % YP)
    a('v_lshl_add_u32 v19, v9, 5, v19')
    a('v_and_b32 v20, 3, v2')
    a('v_lshl_add_u32 v19, v20, 3, v19')
    a('s_lshl_b32 s41, s28, 7')
    a('s_add_u32 s41, s41, %d' % YB)
    a('v_add_u32 v19, s41, v19')
    a('s_add_u32 s41, s40, 64')
    a('v_add_u32 v20, s41, v3')
    a('s_and_b32 s42, s29, 1')
    a('s_lshl_b32 s43, s33, 16')
    a('s_and_b32 s33, s33, 0xffff0000')
    a('s_cmp_eq_u32 s42, 0')
    a('s_cselect_b32 s33, s43, s33')
    a('v_lshlrev_b32 v21, 16, v%d' % HD)
    a('v_and_b32 v22, 0xffff0000, v%d' % HD)
    a('v_add_f32 v21, s33, v21')
    a('v_cmp_eq_u32 vcc, 0, v2')
    a('v_cvt_pk_bf16_f32 v21, v21, v22')
    a('v_cndmask_b32 v%d, v%d, v21, vcc' % (HD, HD))
    HO = 84
    for i in range(4):
        a('ds_write_b128 v20, %s offset:%d' % (vr(HD + 4 * i, 4), 1024 * i))
        for d in range(4):
            prev = HP + i if d == 0 else HD + 4 * i + d - 1
            a('v_alignbit_b32 v%d, v%d, v%d, 16' % (HO + 4 * i + d, HD + 4 * i + d, prev))
        a('ds_write_b128 v20, %s offset:%d' % (vr(HO + 4 * i, 4), 4160 + 1024 * i))
    a.wait_for(*dm)
    a.wait_all(vm=False)
    a('s_barrier')

    ACC = 96
    TMP = 24
    store = [('a', 32 * i) for i in range(8)] + [('v', 128 + 32 * i) for i in range(4)]
    where = {}
    for i in range(6):
        where[('A', i)] = store[i]
        where[('B', i)] = store[6 + i]
    where[('A', 6)] = where[('A', 3)]
    where[('B', 6)] = where[('B', 3)]
    where[('A', 7)] = where[('A', 4)]
    where[('B', 7)] = where[('B', 4)]

    def freg(kind, blk, rho, off=0, n=4):
        k, base = where[(kind, blk)]
        return vr(base + 4 * rho + off, n, k)

    def reads_of(kind, blk, rho):
        if kind == 'A':
            aa = 8 * blk + rho
            o = (aa & 15) * 16
            return ['ds_read2_b32 %s, v%d offset0:%d offset1:%d' % (freg(kind, blk, rho, 0, 2), AA + (aa >> 4), o, o + 1),
                    'ds_read2_b32 %s, v%d offset0:%d offset1:%d' % (freg(kind, blk, rho, 2, 2), AA + (aa >> 4), o + 2, o + 3)]
        beta = 8 * blk - rho
        return ['ds_read_b128 %s, v%d offset:%d' % (freg(kind, blk, rho), BA + (beta & 3), UB + 1024 * (beta >> 2) - 256)]

    mm = []
    for rho in range(8):
        for (al, ga) in [(0, 0), (0, 1), (0, 2), (1, 0), (1, 1), (1, 2), (2, 0), (2, 1), (2, 2)]:
            mm.append((al, ga, rho))
    for rho in range(8):
        for (al, ga) in [(0, 3), (1, 3), (3, 0), (3, 1)]:
            mm.append((al, ga, rho))
    for grp in [[(0, 4), (4, 0)], [(3, 2), (2, 3), (1, 4), (4, 1)], [(0, 5), (5, 0)],
                [(3, 3), (3, 4), (4, 3)], [(4, 2), (2, 4)], [(5, 1), (1, 5)], [(0, 6), (6, 0)],
                [(5, 2), (2, 5)], [(1, 6), (6, 1)], [(0, 7), (7, 0)]]:
        for rho in range(8):
            for (al, ga) in grp:
                mm.append((al, ga, rho))
    assert len(mm) == 288 and len(set(mm)) == 288
    lastuse = {}
    for i, (al, ga, rho) in enumerate(mm):
        lastuse[('A', al, rho)] = i
        lastuse[('B', ga, rho)] = i
    rs, seen = [], set()
    for i, (al, ga, rho) in enumerate(mm):
        for key in (('B', ga, rho), ('A', al, rho)):
            if key not in seen:
                seen.add(key)
                kind, blk, _ = key
                earliest = 0
                if blk >= 6:
                    earliest = lastuse[(kind, blk - 3, rho)] + 2
                for t in reads_of(*key):
                    rs.append((t, earliest, i))
    done_at = {}
    for i, (al, ga, rho) in enumerate(mm):
        done_at[al + ga] = i
    ev = {}
    ywr = {}

    def add(slot, fn):
        ev.setdefault(slot, []).append(fn)

    def ep_write(j):
        t = TMP + 2 * (j & 3)
        a('v_cvt_pk_bf16_f32 v%d, v%d, v%d' % (t, ACC + 4 * j, ACC + 4 * j + 1))
        a('v_cvt_pk_bf16_f32 v%d, v%d, v%d' % (t + 1, ACC + 4 * j + 2, ACC + 4 * j + 3))
        ywr[j] = a('ds_write_b64 v18, %s offset:%d' % (vr(t, 2), 4 * YP * j))

    def ep_barrier(js):
        a.wait_for(*[ywr[j] for j in js])
        a('s_barrier')

    def ep_read(j):
        a('ds_read_b64_tr_b16 %s, v19 offset:%d' % (vr(32 + 2 * (j & 3), 2), 4 * YP * j))

    def ep_gate(j, part):
        y, q = 32 + 2 * (j & 3), Q + 2 * j
        if part < 2:
            a('v_lshlrev_b32 v%d, 16, v%d' % (56 + 4 * part, y + part))
            a('v_and_b32 v%d, 0xffff0000, v%d' % (57 + 4 * part, y + part))
        elif part < 4:
            p = part - 2
            a('v_lshlrev_b32 v%d, 16, v%d' % (58 + 4 * p, q + p))
            a('v_and_b32 v%d, 0xffff0000, v%d' % (59 + 4 * p, q + p))
        elif part < 6:
            p = part - 4
            a('v_mul_f32 v%d, v%d, v%d' % (56 + 4 * p, 56 + 4 * p, 58 + 4 * p))
            a('v_mul_f32 v%d, v%d, v%d' % (57 + 4 * p, 57 + 4 * p, 59 + 4 * p))
        elif part == 6:
            a('v_cvt_pk_bf16_f32 v%d, v56, v57' % q)
            a('v_cvt_pk_bf16_f32 v%d, v60, v61' % (q + 1))
        else:
            a('s_add_u32 s35, s34, %d' % (256 * 2304 * j))
            a('buffer_store_dwordx2 %s, v5, s[36:39], s35 offen' % vr(q, 2))

    groups = [[0, 1, 2], [3], [4], [5], [6], [7]]
    busy = 0
    for js in groups:
        s0 = max(done_at[j] for j in js) + 8
        for k, j in enumerate(js):
            add(s0 + k, lambda j=j: ep_write(j))
        s1 = s0 + len(js) + 3
        add(s1, lambda js=js: ep_barrier(js))
        for k, j in enumerate(js):
            add(s1 + k, lambda j=j: ep_read(j))
        s2 = max(s1 + len(js) + 4, busy)
        for k, j in enumerate(js):
            for part in range(8):
                add(s2 + 8 * k + part, lambda j=j, part=part: ep_gate(j, part))
        busy = s2 + 8 * len(js)
    PRE = int(OPT.get('pre', 10))
    ri = 0
    for _ in range(PRE):
        a(rs[ri][0]); ri += 1
    started = set()
    for i, (al, ga, rho) in enumerate(mm):
        while ri < len(rs) and rs[ri][2] <= i:
            a(rs[ri][0]); ri += 1
        j = al + ga
        acc = vr(ACC + 4 * j, 4)
        a('%s %s, %s, %s, %s' % (mf, acc, freg('A', al, rho), freg('B', ga, rho), acc if j in started else '0'))
        started.add(j)
        if ri < len(rs) and rs[ri][1] <= i:
            a(rs[ri][0]); ri += 1
        for fn in ev.pop(i, []):
            fn()
    for s in sorted(ev):
        for fn in ev[s]:
            fn()
    a('s_endpgm')


def k2b(a):
    mf = 'v_mfma_f32_16x16x32_bf16'
    a('s_load_dwordx2 s[6:7], s[0:1], 88')
    a('s_load_dwordx2 s[12:13], s[0:1], 104')
    a('v_lshrrev_b32 v1, 6, v0')
    a('v_and_b32 v2, 63, v0')
    a('v_readfirstlane_b32 s28, v1')
    a('v_lshlrev_b32 v3, 4, v2')
    a('s_mul_i32 s29, s3, 73728')
    a('s_mul_i32 s30, s28, 9216')
    a('s_add_u32 s29, s29, s30')
    a.wait_all()
    a('s_add_u32 s12, s12, %d' % G_OFF)
    a('s_addc_u32 s13, s13, 0')
    srd(a, 16, 12, G_SIZE)
    dm = [[], []]
    for half in range(2):
        for grp in range(3):
            o = 36864 * half + 3072 * grp
            a('s_add_u32 m0, s30, %d' % o)
            a('s_add_u32 s31, s29, %d' % o)
            for i in range(3):
                dm[half].append(a('buffer_load_dwordx4 v3, s[16:19], s31 offen offset:%d lds' % (1024 * i)))
    srd(a, 20, 6, 2 * ARR)
    a('v_and_b32 v4, 15, v2')
    a('v_lshrrev_b32 v5, 4, v2')
    a('v_bfe_u32 v8, v2, 2, 2')
    a('v_lshl_add_u32 v6, v5, 3, v8')
    a('v_mul_u32_u24 v6, 576, v6')
    a('v_and_b32 v9, 3, v2')
    a('v_lshl_add_u32 v6, v9, 4, v6')
    a('v_and_b32 v10, 1, v5')
    a('v_lshl_add_u32 v6, v10, 3, v6')
    a('v_xor_b32 v7, 8, v6')
    CF, SF = 16, 32
    a('s_lshl_b32 s31, s28, 4')
    a('v_add_u32 v10, s31, v4')
    a('v_cvt_f32_u32 v10, v10')
    a('v_add_f32 v10, 0.5, v10')
    a('v_mul_f32 v10, 0x3c000000, v10')
    a('v_lshlrev_b32 v11, 3, v5')
    a('v_cvt_f32_u32 v11, v11')
    a('v_mul_f32 v11, v11, v10')
    for kap in range(4):
        for i in range(0, 8, 2):
            for q in range(2):
                mul = 32 * kap + i + q
                if mul == 0:
                    a('v_mov_b32 v%d, v11' % (12 + q))
                else:
                    a('s_mov_b32 s32, %s' % f2u(float(mul)))
                    a('v_fma_f32 v%d, s32, v10, v11' % (12 + q))
            a('v_cos_f32 v48, v12')
            a('v_cos_f32 v49, v13')
            a('v_sin_f32 v50, v12')
            a('v_sin_f32 v51, v13')
            a('v_cvt_pk_bf16_f32 v%d, v48, v49' % (CF + 4 * kap + i // 2))
            a('v_cvt_pk_bf16_f32 v%d, v50, v51' % (SF + 4 * kap + i // 2))
    a('s_mul_i32 s33, s3, 57')
    a('s_lshr_b32 s33, s33, 9')
    a('s_mul_i32 s34, s33, 9')
    a('s_sub_u32 s34, s3, s34')
    a('s_lshl_b32 s35, s33, 2')
    a('v_add_u32 v12, s35, v8')
    a('s_lshl_b32 s35, s28, 8')
    a('v_lshl_add_u32 v13, v5, 6, s35')
    a('v_add_u32 v14, v12, v13')
    a('v_sub_u32 v15, v12, v13')
    a('v_add_u32 v15, %d, v15' % (16 * 127))
    a('s_lshl_b32 s35, s34, 6')
    a('s_add_u32 s36, s35, 1152')
    a('v_lshl_add_u32 v48, v9, 4, s36')
    a('s_sub_u32 s36, %d, s35' % (2304 - 16))
    a('v_lshlrev_b32 v49, 4, v9')
    a('v_sub_u32 v49, s36, v49')
    a('s_movk_i32 s37, 2304')
    AD = 52
    for i in range(4):
        for sg in range(2):
            a('v_add_u32 v50, %d, v%d' % (16 * i if sg == 0 else -16 * i, 14 + sg))
            a('v_mad_u32_u24 v%d, v50, s37, v48' % (AD + 4 * i + 2 * sg))
            a('v_sub_u32 v50, 2048, v50')
            a('v_and_b32 v50, 2047, v50')
            a('v_mad_u32_u24 v%d, v50, s37, v49' % (AD + 4 * i + 2 * sg + 1))
    PA, QA, FB = 68, 104, 140
    NB = 8
    items = [(kap, tau, part) for kap in range(4) for tau in range(9) for part in range(2)]

    def rd(n):
        kap, tau, part = items[n]
        f = FB + 4 * (n % NB)
        for h in range(2):
            a('ds_read_b64_tr_b16 %s, v%d offset:%d' % (vr(f + 2 * h, 2), 6 + part, kap * 18432 + h * 2304 + tau * 64))

    LA = 6
    nxt = 0
    for half in range(2):
        a.wait_for(*dm[half])
        a('s_barrier')
        lo, hi = 36 * half, 36 * half + 36
        for n in range(lo, hi):
            while nxt < min(hi, n + LA + 1):
                rd(nxt); nxt += 1
            kap, tau, part = items[n]
            acc = vr((QA if part else PA) + 4 * tau, 4)
            a('%s %s, %s, %s, %s' % (mf, acc, vr((SF if part else CF) + 4 * kap, 4), vr(FB + 4 * (n % NB), 4), acc if kap else '0'))
    YT, ST = 172, 192
    k = 0
    for i in range(4):
        for sg in range(2):
            y = YT + 10 * sg
            for tau in range(9):
                a('%s v%d, v%d, v%d' % ('v_sub_f32' if sg else 'v_add_f32', y + tau, PA + 4 * tau + i, QA + 4 * tau + i))
            st = ST + 8 * (k % 4)
            for d in range(4):
                a('v_cvt_pk_bf16_f32 v%d, v%d, v%d' % (st + d, y + 2 * d, y + 2 * d + 1))
            a('buffer_store_dwordx4 %s, v%d, s[20:23], 0 offen' % (vr(st, 4), AD + 4 * i + 2 * sg))
            for d in range(4):
                a('v_cvt_pk_bf16_f32 v%d, v%d, v%d' % (st + 4 + d, y + 8 - 2 * d, y + 7 - 2 * d))
            a('buffer_store_dwordx4 %s, v%d, s[20:23], 0 offen' % (vr(st + 4, 4), AD + 4 * i + 2 * sg + 1))
            k += 1
    a('s_endpgm')


def kd(a, name, vgpr, accum, sgpr=64):
    a.raw('.p2align 6')
    a.raw('.amdhsa_kernel ' + name)
    a.raw('  .amdhsa_next_free_vgpr %d' % vgpr)
    a.raw('  .amdhsa_next_free_sgpr %d' % sgpr)
    a.raw('  .amdhsa_accum_offset %d' % accum)
    a.raw('  .amdhsa_group_segment_fixed_size 0')
    a.raw('  .amdhsa_kernarg_size 112')
    a.raw('  .amdhsa_user_sgpr_count 2')
    a.raw('  .amdhsa_user_sgpr_kernarg_segment_ptr 1')
    a.raw('  .amdhsa_system_sgpr_workgroup_id_x 1')
    a.raw('.end_amdhsa_kernel')


def main():
    a = Asm()
    ref = open('cdna_kernels/%s.s.ref' % NAME).read().splitlines()
    for l in ref:
        if l.startswith(';   offset') or l.startswith('; Kernarg'):
            a.raw(l)
    LL = {'1': '; @launch kernel=k1_kernel grid=(272,1,1) block=(256,1,1) lds=55424',
          '2': '; @launch kernel=k2_kernel grid=(184,1,1) block=(256,1,1) lds=73728',
          'e': '; @launch kernel=e_kernel grid=(8,1,1) block=(64,1,1) lds=0'}
    for ch in OPT.get('list', '12'):
        a.raw(LL[ch])
    a.raw('.amdgcn_target "amdgcn-amd-amdhsa--gfx950"')
    a.raw('.text')
    a.raw('.globl k1_kernel')
    a.raw('.p2align 8')
    a.raw('.type k1_kernel,@function')
    a.label('k1_kernel')
    a('s_cmp_lt_u32 s2, 128')
    a('s_cbranch_scc1 L_k1b')
    a('s_cmp_ge_u32 s2, 272')
    a('s_cbranch_scc1 L_k1_exit')
    k1a(a)
    a.label('L_k1_exit')
    a('s_endpgm')
    a.reset_state()
    a.raw('.p2align 6')
    a.label('L_k1b')
    k1b(a)
    a.reset_state()
    a.raw('.globl k2_kernel')
    a.raw('.p2align 8')
    a.raw('.type k2_kernel,@function')
    a.label('k2_kernel')
    a('s_cmp_ge_u32 s2, 144')
    a('s_cbranch_scc1 L_k2b')
    a('s_and_b32 s4, s2, 7')
    a('s_lshr_b32 s5, s2, 3')
    a('s_lshl_b32 s3, s4, 4')
    a('s_add_u32 s3, s3, s5')
    a('s_lshl_b32 s4, s4, 1')
    a('s_add_u32 s4, s4, s5')
    a('s_add_u32 s4, s4, 112')
    a('s_cmp_lt_u32 s5, 16')
    a('s_cselect_b32 s3, s3, s4')
    k2a(a)
    a.reset_state()
    a.raw('.p2align 6')
    a.label('L_k2b')
    a('s_sub_u32 s3, s2, 144')
    a('s_cmp_ge_u32 s3, 36')
    a('s_cbranch_scc1 L_k2_exit')
    k2b(a)
    a.label('L_k2_exit')
    a('s_endpgm')
    if 'e' in OPT.get('list', ''):
        a.raw('.globl e_kernel')
        a.raw('.p2align 8')
        a.raw('.type e_kernel,@function')
        a.label('e_kernel')
        a('s_endpgm')
    a.raw('.section .rodata,"a"')
    if 'e' in OPT.get('list', ''):
        kd(a, 'e_kernel', 8, 8)
    kd(a, 'k1_kernel', 256, 256)
    kd(a, 'k2_kernel', 512, 256)
    out = sys.argv[1] if len(sys.argv) > 1 else 'cdna_kernels/%s.s' % NAME
    open(out, 'w').write(a.text())
    print('wrote', out, 'lines', len(a.out), 'auto nops', a.nops)


main()
```

```python
import math, sys
from asmlib import Asm, vr, f2u

NAME = 'concat_heads__ssm_conv_h3__spectral_fnet__prompt'
ARR = 2359296
G_OFF = ARR
G_SIZE = 36 * 128 * 576
PITCHG = 4640

OPT = dict(a.split('=') for a in sys.argv[2:] if '=' in a)


STAMP = int(OPT.get('stamp', 0))
STAMP_OFF = 16 << 20


def stamp(a, i):
    if STAMP:
        a.raw('    s_memrealtime s[%d:%d]' % (64 + 2 * i, 65 + 2 * i))


def endpgm(a, kern, n):
    if STAMP:
        a.raw('    s_waitcnt vmcnt(0)')
        stamp(a, n - 1)
        a.raw('    s_load_dwordx2 s[84:85], s[0:1], 104')
        a.raw('    s_waitcnt lgkmcnt(0)')
        a.raw('    s_mov_b32 s88, s84')
        a.raw('    s_and_b32 s89, s85, 0xffff')
        a.raw('    s_mov_b32 s90, 0x10000000')
        a.raw('    s_mov_b32 s91, 0x20000')
        a.raw('    s_lshl_b32 s86, s2, 8')
        a.raw('    s_add_u32 s86, s86, %d' % (STAMP_OFF + kern * 512 * 256))
        a.raw('    v_lshrrev_b32 v1, 6, v0')
        a.raw('    v_lshlrev_b32 v1, 6, v1')
        a.raw('    v_and_b32 v2, 63, v0')
        a.raw('    v_cmp_eq_u32 vcc, 0, v2')
        a.raw('    s_nop 4')
        a.raw('    s_and_saveexec_b64 s[92:93], vcc')
        for i in range(n):
            a.raw('    v_mov_b32 v2, s%d' % (64 + 2 * i))
            a.raw('    buffer_store_dword v2, v1, s[88:91], s86 offen offset:%d' % (4 * i))
            a.raw('    s_nop 2')
        a.raw('    s_getreg_b32 s94, hwreg(HW_REG_XCC_ID)')
        a.raw('    v_mov_b32 v2, s94')
        a.raw('    buffer_store_dword v2, v1, s[88:91], s86 offen offset:60')
    a('s_endpgm')


def srd(a, d, base, size):
    a('s_mov_b32 s%d, s%d' % (d, base))
    a('s_and_b32 s%d, s%d, 0xffff' % (d + 1, base + 1))
    a('s_mov_b32 s%d, %d' % (d + 2, size))
    a('s_mov_b32 s%d, 0x20000' % (d + 3))


def k1a(a):
    a.comment('---- K1/A: kv product, transposed into ws ----')
    stamp(a, 0)
    a('s_load_dwordx4 s[4:7], s[0:1], 8')
    a('s_load_dwordx2 s[8:9], s[0:1], 24')
    a('s_load_dwordx2 s[10:11], s[0:1], 104')
    a('v_lshrrev_b32 v1, 6, v0')
    a('v_and_b32 v2, 63, v0')
    a('v_readfirstlane_b32 s28, v1')
    a('s_sub_u32 s3, s2, 128')
    a('s_and_b32 s29, s3, 7')
    a('s_lshr_b32 s30, s3, 3')
    a('s_lshl_b32 s31, s29, 1')
    a('s_add_u32 s31, s31, s30')
    a('s_sub_u32 s31, s31, 16')
    a('s_cmp_lt_u32 s30, 16')
    a('s_cselect_b32 s29, s29, 8')
    a('s_cselect_b32 s30, s30, s31')
    a('s_lshl_b32 s31, s30, 2')
    a('s_add_u32 s31, s31, s28')
    a('s_mul_i32 s32, s31, %d' % (32 * 1152))
    a('s_lshl_b32 s33, s29, 7')
    a('s_add_u32 s32, s32, s33')
    a('s_sub_u32 s32, s32, %d' % (4 * 1152))
    a('v_lshrrev_b32 v3, 3, v2')
    a('v_and_b32 v4, 7, v2')
    a('v_mul_u32_u24 v3, 1152, v3')
    a('v_lshl_add_u32 v3, v4, 4, v3')
    a('v_add_u32 v3, s32, v3')
    a('v_add_u32 v4, 9216, v3')
    a('v_add_u32 v5, 4608, v3')
    a('s_mul_i32 s34, s28, 9216')
    a('s_mov_b32 s35, 9216')
    a('s_mov_b32 s36, 18432')
    a('s_mov_b32 s37, 27648')
    srd(a, 12, 4, ARR)
    srd(a, 16, 6, ARR)
    so = ['0', 's35', 's36', 's37']
    dm = []
    a('s_mov_b32 m0, s34')
    dm.append(a('buffer_load_dwordx4 v3, s[12:15], 0 offen lds'))
    for i in range(1, 4):
        a('s_add_u32 m0, s34, %d' % (1024 * i))
        dm.append(a('buffer_load_dwordx4 v4, s[12:15], %s offen lds' % so[i - 1]))
    a('s_add_u32 m0, s34, 4096')
    a('s_mov_b32 exec_hi, 0')
    dm.append(a('buffer_load_dwordx4 v4, s[12:15], s37 offen lds'))
    a('s_mov_b32 exec_hi, -1')
    for i in range(4):
        a('s_add_u32 m0, s34, %d' % (5120 + 1024 * i))
        dm.append(a('buffer_load_dwordx4 v5, s[16:19], %s offen lds' % so[i]))
    stamp(a, 1)
    srd(a, 24, 8, 4608)
    a('s_lshl_b32 s33, s29, 9')
    a('v_lshlrev_b32 v6, 3, v2')
    a('buffer_load_dwordx2 v[8:9], v6, s[24:27], s33 offen')
    srd(a, 20, 10, ARR)
    a('v_bfe_u32 v6, v2, 2, 2')
    a('v_lshlrev_b32 v6, 7, v6')
    a('v_lshrrev_b32 v7, 4, v2')
    a('v_lshl_add_u32 v6, v7, 5, v6')
    a('v_and_b32 v7, 3, v2')
    a('v_lshl_add_u32 v6, v7, 3, v6')
    a('v_add_u32 v6, s34, v6')
    a('v_xor_b32 v7, s28, v7')
    a('v_lshlrev_b32 v7, 4, v7')
    a('v_lshrrev_b32 v10, 2, v2')
    a('v_lshl_add_u32 v7, v10, 14, v7')
    a('s_lshl_b32 s38, s29, 18')
    a('s_lshl_b32 s39, s31, 8')
    a('s_add_u32 s38, s38, s39')
    a('s_mov_b32 s40, 0xffff')
    a('v_and_b32 v10, 0xffff0000, v9')
    a('v_bfi_b32 v11, s40, v9, v8')
    a('v_and_b32 v12, 0xffff, v8')
    a('v_alignbit_b32 v13, v9, v9, 16')
    a('v_alignbit_b32 v14, v8, v8, 16')
    a.wait_for(*dm)
    stamp(a, 2)
    K, V = 16, 34
    for i in range(9):
        a('ds_read_b64_tr_b16 %s, v6 offset:%d' % (vr(K + 2 * i, 2), 512 * i))
        if i < 8:
            a('ds_read_b64_tr_b16 %s, v6 offset:%d' % (vr(V + 2 * i, 2), 5120 + 512 * i))
    E, U, OUT = 50, 58, 68
    for i in range(4):
        ms = [4 * i + d for d in range(4)]
        for d, m in enumerate(ms):
            a('v_dot2_f32_bf16 v%d, v%d, v10, 0' % (E + 2 * d, K + m))
            a('v_dot2_f32_bf16 v%d, v%d, v13, 0' % (E + 2 * d + 1, K + m + 1))
        for d, m in enumerate(ms):
            a('v_dot2_f32_bf16 v%d, v%d, v11, v%d' % (E + 2 * d, K + m + 1, E + 2 * d))
            a('v_dot2_f32_bf16 v%d, v%d, v14, v%d' % (E + 2 * d + 1, K + m + 2, E + 2 * d + 1))
        for d, m in enumerate(ms):
            a('v_dot2_f32_bf16 v%d, v%d, v12, v%d' % (E + 2 * d, K + m + 2, E + 2 * d))
        for d, m in enumerate(ms):
            a('v_lshlrev_b32 v%d, 16, v%d' % (U + 2 * d, V + m))
            a('v_and_b32 v%d, 0xffff0000, v%d' % (U + 2 * d + 1, V + m))
        for d, m in enumerate(ms):
            a('v_pk_mul_f32 %s, %s, %s' % (vr(U + 2 * d, 2), vr(E + 2 * d, 2), vr(U + 2 * d, 2)))
        for d, m in enumerate(ms):
            a('v_cvt_pk_bf16_f32 v%d, v%d, v%d' % (OUT + 4 * i + 3 - d, U + 2 * d + 1, U + 2 * d))
        a('buffer_store_dwordx4 %s, v7, s[20:23], s38 offen offset:%d' % (vr(OUT + 4 * i, 4), 64 * i))
    stamp(a, 3)
    endpgm(a, 0, 5)


def k1b(a):
    UU, TT = 18432, 36864
    stamp(a, 0)
    a('s_load_dwordx2 s[4:5], s[0:1], 48')
    a('s_load_dwordx2 s[10:11], s[0:1], 104')
    a('v_lshrrev_b32 v1, 6, v0')
    a('v_and_b32 v2, 63, v0')
    a('v_readfirstlane_b32 s28, v1')
    a('v_lshlrev_b32 v3, 4, v2')
    a('v_add_u32 v7, 146304, v3')
    a('v_cmp_le_u32 vcc, 8, v2')
    a('v_cmp_le_u32 s[30:31], 16, v2')
    a('v_cmp_le_u32 s[32:33], 24, v2')
    a('v_cndmask_b32 v4, v3, v7, vcc')
    a('v_cndmask_b32 v5, v3, v7, s[30:31]')
    a('v_cndmask_b32 v6, v3, v7, s[32:33]')
    a('s_lshl_b32 s29, s28, 9')
    a('s_add_u32 s29, s29, s2')
    a('s_mul_i32 s29, s29, 1152')
    a('s_add_u32 s34, s29, 1024')
    a('s_add_u32 s35, s29, %d' % (2048 + 146304))
    a('s_add_u32 s36, s29, %d' % (3072 + 2 * 146304))
    a('s_add_u32 s37, s29, %d' % (4096 + 3 * 146304))
    a('s_mul_i32 s38, s28, 4608')
    srd(a, 12, 4, ARR)
    dm = []
    for k, (vo, so) in enumerate([(3, 29), (4, 34), (5, 35), (6, 36), (3, 37)]):
        a('s_add_u32 m0, s38, %d' % (1024 * k))
        if k == 4:
            a('s_mov_b32 exec_hi, 0')
        dm.append(a('buffer_load_dwordx4 v%d, s[12:15], s%d offen lds' % (vo, so)))
    a('s_mov_b32 exec_hi, -1')
    stamp(a, 1)
    a('s_add_u32 s10, s10, %d' % G_OFF)
    a('s_addc_u32 s11, s11, 0')
    srd(a, 16, 10, G_SIZE)
    a('v_and_b32 v3, 15, v2')
    a('v_lshrrev_b32 v4, 4, v2')
    XA = 8
    a('v_mul_u32_u24 v5, 5, v3')
    a('v_mul_u32_u24 v6, 57, v5')
    a('v_lshrrev_b32 v6, 9, v6')
    a('v_mul_u32_u24 v6, 9, v6')
    a('v_sub_u32 v5, v5, v6')
    a('v_mul_u32_u24 v6, 1152, v4')
    a('v_lshl_add_u32 v6, v3, 3, v6')
    a('v_add_u32 v6, s38, v6')
    a('v_lshl_add_u32 v%d, v5, 7, v6' % XA)
    a('v_add_u32 v7, 1024, v6')
    for j in range(1, 9):
        a('v_cmp_eq_u32 vcc, v%d, v7' % (XA + j - 1))
        a('v_add_u32 v%d, 128, v%d' % (XA + j, XA + j - 1))
        a('v_cndmask_b32 v%d, v%d, v6, vcc' % (XA + j, XA + j))
    a('s_lshl_b32 s39, s28, 2')
    a('v_add_u32 v5, s39, v4')
    a('v_lshrrev_b32 v6, 1, v5')
    a('v_lshrrev_b32 v7, 1, v3')
    a('v_xor_b32 v6, v6, v7')
    a('v_lshlrev_b32 v6, 4, v6')
    a('v_lshl_add_u32 v6, v5, 7, v6')
    a('v_and_b32 v7, 1, v3')
    a('v_lshl_add_u32 v6, v7, 3, v6')
    a('v_add_u32 v17, %d, v6' % UU)
    a('v_lshrrev_b32 v6, 1, v3')
    a('v_xor_b32 v6, v6, v4')
    a('v_lshlrev_b32 v6, 4, v6')
    a('v_lshl_add_u32 v6, v3, 7, v6')
    a('v_add_u32 v18, %d, v6' % UU)
    a('v_xor_b32 v19, 64, v18')
    a('s_lshl_b32 s39, s28, 4')
    a('v_add_u32 v5, s39, v3')
    a('v_mul_u32_u24 v6, 9, v5')
    a('v_mul_u32_u24 v7, %d, v4' % PITCHG)
    a('v_add_u32 v7, %d, v7' % TT)
    a('s_mov_b32 s40, 0x80008000')
    a('v_mov_b32 v31, s40')
    for p in range(5):
        if p:
            a('v_add_u32 v30, %d, v6' % (64 * p))
            a('v_subrev_u32 v32, 576, v30')
            a('v_min_u32 v30, v30, v32')
        else:
            a('v_mov_b32 v30, v6')
        a('v_sub_u32 v32, 576, v30')
        a('v_cmp_lt_u32 vcc, v32, v30')
        a('v_min_u32 v30, v30, v32')
        a('v_lshl_add_u32 v%d, v30, 4, v7' % (20 + p))
        a('v_cndmask_b32 v%d, 0, v31, vcc' % (25 + p))
    a('s_lshl_b32 s39, s28, 2')
    a('v_add_u32 v30, s39, v4')
    a('v_and_b32 v44, 3, v2')
    a('v_bfe_u32 v45, v2, 2, 2')
    a('v_mul_u32_u24 v46, %d, v44' % PITCHG)
    a('v_lshl_add_u32 v46, v45, 7, v46')
    a('v_add_u32 v46, %d, v46' % TT)
    a('s_mov_b32 s41, %d' % (9 * 73728))
    a('v_mul_lo_u32 v47, v45, s41')
    a('v_lshl_add_u32 v47, v44, 4, v47')
    a('s_mul_i32 s42, s2, 576')
    a('s_mov_b32 s43, %d' % (73728 - 576))
    for k in range(6):
        a('v_add_u32 v48, %d, v30' % (16 * k))
        if k == 5:
            a('v_cmp_lt_u32 vcc, 80, v48')
            a('v_min_u32 v48, 80, v48')
        a('v_mul_u32_u24 v49, 57, v48')
        a('v_lshrrev_b32 v49, 9, v49')
        a('v_mad_u32_u24 v50, v49, 23, v48')
        a('v_lshl_add_u32 v%d, v50, 4, v46' % (32 + k))
        a('v_lshl_add_u32 v50, v48, 6, v47')
        a('v_mad_u32_u24 v%d, v49, s43, v50' % (38 + k))
        if k == 5:
            a('v_cndmask_b32 v43, v43, v31, vcc')
    CF, SF, NF = 52, 60, 68
    a('v_cvt_f32_u32 v76, v5')
    a('v_mul_f32 v76, 0x3c800000, v76')
    a('v_lshlrev_b32 v77, 3, v4')
    a('v_cvt_f32_u32 v77, v77')
    a('v_mul_f32 v77, v77, v76')
    for kap in range(2):
        for i in range(0, 8, 2):
            for q in range(2):
                mul = 32 * kap + i + q
                if mul == 0:
                    a('v_mov_b32 v%d, v77' % (78 + q))
                else:
                    a('s_mov_b32 s44, %s' % f2u(float(mul)))
                    a('v_fma_f32 v%d, s44, v76, v77' % (78 + q))
            a('v_cos_f32 v80, v78')
            a('v_cos_f32 v81, v79')
            a('v_sin_f32 v82, v78')
            a('v_sin_f32 v83, v79')
            a('v_cvt_pk_bf16_f32 v%d, v80, v81' % (CF + 4 * kap + i // 2))
            a('v_cvt_pk_bf16_f32 v%d, v82, v83' % (SF + 4 * kap + i // 2))
            a('v_xor_b32 v%d, s40, v%d' % (NF + 4 * kap + i // 2, SF + 4 * kap + i // 2))
    A1, A2 = 84, 88
    a('v_cvt_f32_u32 v76, v3')
    a('v_cvt_f32_u32 v77, s2')
    a('v_add_f32 v78, -4.0, v76')
    a('v_add_f32 v78, -4.0, v78')
    a('v_mul_f32 v77, v77, v78')
    a('v_mul_f32 v77, 0x3a000000, v77')
    a('v_mul_f32 v76, 0x3d800000, v76')
    a('v_lshlrev_b32 v78, 2, v4')
    a('v_cvt_f32_u32 v78, v78')
    a('v_fma_f32 v92, v78, v76, v77')
    a('v_add_f32 v93, v92, v76')
    a('v_add_f32 v94, v93, v76')
    a('v_add_f32 v95, v94, v76')
    for i in range(4):
        a('v_cos_f32 v%d, v%d' % (96 + i, 92 + i))
        a('v_sin_f32 v%d, v%d' % (100 + i, 92 + i))
    a('v_cvt_pk_bf16_f32 v92, v96, v97')
    a('v_cvt_pk_bf16_f32 v93, v98, v99')
    a('v_cvt_pk_bf16_f32 v94, v100, v101')
    a('v_cvt_pk_bf16_f32 v95, v102, v103')
    a('v_xor_b32 v96, s40, v94')
    a('v_xor_b32 v97, s40, v95')
    a('s_bitcmp1_b32 s2, 3')
    a('s_cselect_b64 vcc, -1, 0')
    re_f, im_f = [92, 93, 94, 95], [96, 97, 92, 93]
    for i in range(4):
        a('v_cndmask_b32 v%d, v%d, v%d, vcc' % (A1 + i, re_f[i], im_f[i]))
        a('v_cndmask_b32 v%d, v%d, v%d, vcc' % (A2 + i, im_f[i], re_f[i]))
    c = [math.cos(2 * math.pi * k / 9) for k in range(5)]
    s = [math.sin(2 * math.pi * k / 9) for k in range(5)]
    cs = {'c1': (46, c[1]), 'c2': (47, c[2]), 'c4': (48, c[4]), 'h': (49, -0.5),
          's1': (50, s[1]), 's2': (51, s[2]), 's3': (52, s[3]), 's4': (53, s[4])}
    for r, val in cs.values():
        a('s_mov_b32 s%d, %s' % (r, f2u(val)))

    def cst(nm):
        r = cs[nm][0]
        return 's[%d:%d]' % (r & ~1, (r & ~1) + 1), r & 1

    def pfma(d, x, nm, acc, negc=False, nega=False):
        sp, hi = cst(nm)
        t = 'v_pk_fma_f32 %s, %s, %s, %s op_sel:[0,%d,0] op_sel_hi:[1,%d,1]' % (vr(d, 2), vr(x, 2), sp, vr(acc, 2), hi, hi)
        if negc or nega:
            t += ' neg_lo:[0,%d,%d] neg_hi:[0,%d,%d]' % (negc, nega, negc, nega)
        a(t)

    def pmul(d, x, nm, negc=False):
        sp, hi = cst(nm)
        t = 'v_pk_mul_f32 %s, %s, %s op_sel:[0,%d] op_sel_hi:[1,%d]' % (vr(d, 2), vr(x, 2), sp, hi, hi)
        if negc:
            t += ' neg_lo:[0,1] neg_hi:[0,1]'
        a(t)

    def padd(d, x, y, neg=False):
        a('v_pk_add_f32 %s, %s, %s%s' % (vr(d, 2), vr(x, 2), vr(y, 2), ' neg_lo:[0,1] neg_hi:[0,1]' if neg else ''))

    stamp(a, 2)
    a.wait_for(*dm)
    stamp(a, 3)
    XR = 104
    for j in range(9):
        a('ds_read_b64 %s, v%d' % (vr(XR + 2 * j, 2), XA + j))
    Z, AB, OU, PK = 122, 140, 156, 182
    for sg in range(2):
        for j in range(9):
            a('v_lshlrev_b32 v%d, 16, v%d' % (Z + 2 * ((j + 2 * sg) % 9), XR + 2 * j + sg))
            a('v_and_b32 v%d, 0xffff0000, v%d' % (Z + 2 * ((j + 2 * sg + 1) % 9) + 1, XR + 2 * j + sg))
        z = lambda k: Z + 2 * k
        A = lambda j: AB + 2 * (j - 1)
        B = lambda j: AB + 8 + 2 * (j - 1)
        o = lambda cidx: OU + 2 * cidx
        M, N, T, W = OU + 18, OU + 20, OU + 22, OU + 24
        for j in range(1, 5):
            padd(A(j), z(j), z(9 - j))
            padd(B(j), z(j), z(9 - j), neg=True)
        pfma(M, A(3), 'h', z(0))
        padd(N, z(0), A(3))
        padd(T, A(1), A(2))
        pmul(W, B(3), 's3', negc=True)
        pfma(o(1), A(1), 'c1', M)
        pfma(o(3), A(1), 'c2', M)
        pfma(o(7), A(1), 'c4', M)
        padd(T, T, A(4))
        pfma(o(2), B(1), 's1', W, negc=True)
        pfma(o(4), B(1), 's2', W, negc=True, nega=True)
        pfma(o(8), B(1), 's4', W, negc=True)
        padd(o(6), B(1), B(2), neg=True)
        pfma(o(1), A(2), 'c2', o(1))
        pfma(o(3), A(2), 'c4', o(3))
        pfma(o(7), A(2), 'c1', o(7))
        padd(o(0), N, T)
        pfma(o(2), B(2), 's2', o(2), negc=True)
        pfma(o(4), B(2), 's4', o(4), negc=True)
        pfma(o(8), B(2), 's1', o(8))
        padd(o(6), o(6), B(4))
        pfma(o(5), T, 'h', N)
        pfma(o(1), A(4), 'c4', o(1))
        pfma(o(3), A(4), 'c1', o(3))
        pfma(o(7), A(4), 'c2', o(7))
        pfma(o(2), B(4), 's4', o(2), negc=True)
        pfma(o(4), B(4), 's1', o(4))
        pfma(o(8), B(4), 's2', o(8))
        pmul(o(6), o(6), 's3', negc=True)
        for cidx in (0, 5, 1, 3, 7, 2, 4, 8, 6):
            a('v_cvt_pk_bf16_f32 v%d, v%d, v%d' % (PK + 2 * cidx + sg, o(cidx), o(cidx) + 1))
            if sg == 1:
                a('ds_write_b64 v17, %s offset:%d' % (vr(PK + 2 * cidx, 2), 2048 * cidx))
    a.wait_all(vm=False)
    a('s_barrier')
    stamp(a, 4)
    UF = 104
    uf = lambda cidx, kap: vr(UF + 8 * cidx + 4 * kap, 4)
    for cidx in range(9):
        for kap in range(2):
            a('ds_read_b128 %s, v%d offset:%d' % (uf(cidx, kap), 18 + kap, 2048 * cidx))
    ZA = 176
    BF = 216
    GA = 236
    mf = 'v_mfma_f32_16x16x32_bf16'

    def h2(p):
        zr, zi = vr(ZA + 8 * p, 4), vr(ZA + 8 * p + 4, 4)
        if p == 0:
            seq = [(zr, 0, 0, CF), (zi, 0, 0, NF), (zr, 0, 1, CF), (zi, 0, 1, NF)]
        else:
            cr, ci = 2 * p - 1, 2 * p
            seq = [(zr, cr, 0, CF), (zi, cr, 0, NF), (zr, cr, 1, CF), (zi, cr, 1, NF),
                   (zr, ci, 0, SF), (zi, ci, 0, CF), (zr, ci, 1, SF), (zi, ci, 1, CF)]
        seen = set()
        for d, cidx, kap, cf in seq:
            a('%s %s, %s, %s, %s' % (mf, d, uf(cidx, kap), vr(cf + 4 * kap, 4), d if d in seen else '0'))
            seen.add(d)

    def pack(p):
        zz = ZA + 8 * p
        for i in range(4):
            a('v_cvt_pk_bf16_f32 v%d, v%d, v%d' % (BF + 4 * p + i, zz + 2 * i, zz + 2 * i + 1))
        a('v_xor_b32 v%d, v%d, v%d' % (BF + 4 * p + 2, 25 + p, BF + 4 * p + 2))
        a('v_xor_b32 v%d, v%d, v%d' % (BF + 4 * p + 3, 25 + p, BF + 4 * p + 3))

    def seqst(p):
        g = GA + 8 * (p & 1)
        a('%s %s, %s, %s, 0' % (mf, vr(g, 4), vr(A1, 4), vr(BF + 4 * p, 4)))
        a('%s %s, %s, %s, 0' % (mf, vr(g + 4, 4), vr(A2, 4), vr(BF + 4 * p, 4)))

    def fin(p):
        g = GA + 8 * (p & 1)
        for i in range(4):
            a('v_cvt_pk_bf16_f32 v%d, v%d, v%d' % (ZA + 8 * p + i, g + 2 * i, g + 2 * i + 1))
        a('ds_write_b128 v%d, %s' % (20 + p, vr(ZA + 8 * p, 4)))

    h2(0); h2(1); pack(0); seqst(0)
    h2(2); pack(1); fin(0); seqst(1)
    h2(3); pack(2); fin(1); seqst(2)
    h2(4); pack(3); fin(2); seqst(3)
    pack(4); seqst(4); fin(3); fin(4)
    a.wait_all(vm=False)
    a('s_barrier')
    stamp(a, 5)
    RB = 104
    for k in range(6):
        a('ds_read_b64_tr_b16 %s, v%d' % (vr(RB + 4 * k, 2), 32 + k))
        a('ds_read_b64_tr_b16 %s, v%d offset:8' % (vr(RB + 4 * k + 2, 2), 32 + k))
    for k in range(6):
        a('buffer_store_dwordx4 %s, v%d, s[16:19], s42 offen' % (vr(RB + 4 * k, 4), 38 + k))
    stamp(a, 6)
    endpgm(a, 0, 8)


def k2a(a):
    UB, HB, YB = 2304, 18688, 51968
    HW, YP = 8320, 576
    mf = 'v_mfma_f32_16x16x32_bf16'
    stamp(a, 0)
    a('s_load_dwordx2 s[4:5], s[0:1], 0')
    a('s_load_dwordx4 s[8:11], s[0:1], 32')
    a('s_load_dwordx2 s[6:7], s[0:1], 88')
    a('s_load_dwordx2 s[12:13], s[0:1], 104')
    a('v_lshrrev_b32 v1, 6, v0')
    a('v_and_b32 v2, 63, v0')
    a('v_readfirstlane_b32 s28, v1')
    a('v_lshlrev_b32 v3, 4, v2')
    a('v_add_u32 v4, -4, v3')
    a('s_lshl_b32 s29, s3, 2')
    a('s_add_u32 s29, s29, s28')
    a('s_lshl_b32 s30, s29, 12')
    a('s_lshl_b32 s31, s28, 12')
    a('s_add_u32 s31, s31, %d' % UB)
    a('s_lshr_b32 s32, s29, 1')
    a('s_lshl_b32 s32, s32, 2')
    a.wait_all()
    a('s_load_dword s33, s[10:11], s32')
    a('s_add_u32 s8, s8, s30')
    a('s_addc_u32 s9, s9, 0')
    srd(a, 16, 8, 4096)
    srd(a, 20, 12, ARR)
    HD, HP = 64, 80
    hl = []
    for i in range(4):
        hl.append(a('buffer_load_dwordx4 %s, v3, s[16:19], 0 offen offset:%d' % (vr(HD + 4 * i, 4), 1024 * i)))
        if i == 0:
            hl.append(a('buffer_load_dword v%d, v4, s[16:19], 0 offen' % HP))
        else:
            hl.append(a('buffer_load_dword v%d, v3, s[16:19], 0 offen offset:%d' % (HP + i, 1024 * i - 4)))
    a('s_mov_b32 m0, s31')
    dm = []
    for i in range(4):
        dm.append(a('buffer_load_dwordx4 v3, s[20:23], s30 offen offset:%d lds' % (1024 * i)))
    srd(a, 24, 4, ARR)
    Q = 40
    a('v_mul_u32_u24 v5, 1152, v0')
    a('s_lshl_b32 s34, s3, 3')
    ql = []
    for j in range(8):
        a('s_add_u32 s35, s34, %d' % (256 * 1152 * j))
        ql.append(a('buffer_load_dwordx2 %s, v5, s[24:27], s35 offen' % vr(Q + 2 * j, 2)))
    stamp(a, 1)
    srd(a, 36, 6, 2 * ARR)
    a('v_lshlrev_b32 v5, 1, v5')
    a('v_mov_b32 v6, 0')
    a('v_mov_b32 v7, 0')
    a('v_lshlrev_b32 v8, 3, v0')
    a('ds_write_b64 v8, v[6:7] offset:256')
    a('s_mul_i32 s40, s28, %d' % HW)
    a('s_add_u32 s40, s40, %d' % HB)
    a('v_and_b32 v8, 15, v2')
    a('v_lshlrev_b32 v9, 2, v8')
    a('v_add_u32 v9, s40, v9')
    a('ds_write_b32 v9, v6')
    a('ds_write_b32 v9, v6 offset:4160')
    a('v_lshrrev_b32 v9, 4, v2')
    AA, BA = 10, 14
    a('v_lshl_add_u32 v18, v9, 3, v8')
    a('v_and_b32 v19, 1, v8')
    a('v_sub_u32 v18, v18, v19')
    a('v_lshlrev_b32 v18, 1, v18')
    a('v_mul_u32_u24 v19, 4160, v19')
    a('v_sub_u32 v18, v18, v19')
    a('s_add_u32 s41, s40, %d' % (64 + 4160 - 28))
    a('v_add_u32 v%d, s41, v18' % AA)
    for i in range(1, 4):
        a('v_add_u32 v%d, %d, v%d' % (AA + i, 1024 * i, AA))
    a('v_lshlrev_b32 v18, 1, v8')
    a('v_sub_u32 v18, v18, v9')
    for b in range(4):
        a('v_add_u32 v19, %d, v18' % (4 * b + 1 + 4))
        a('v_lshrrev_b32 v20, 2, v19')
        a('v_add_u32 v20, 3, v20')
        a('v_xor_b32 v20, s28, v20')
        a('v_and_b32 v20, 3, v20')
        a('v_lshlrev_b32 v20, 4, v20')
        a('v_lshl_add_u32 v%d, v19, 6, v20' % (BA + b))
    a('v_lshlrev_b32 v18, 5, v8')
    a('v_lshl_add_u32 v18, v9, 3, v18')
    a('s_mul_i32 s41, s28, %d' % YP)
    a('s_add_u32 s41, s41, %d' % YB)
    a('v_add_u32 v18, s41, v18')
    a('v_bfe_u32 v19, v2, 2, 2')
    a('v_mul_u32_u24 v19, %d, v19' % YP)
    a('v_lshl_add_u32 v19, v9, 5, v19')
    a('v_and_b32 v20, 3, v2')
    a('v_lshl_add_u32 v19, v20, 3, v19')
    a('s_lshl_b32 s41, s28, 7')
    a('s_add_u32 s41, s41, %d' % YB)
    a('v_add_u32 v19, s41, v19')
    a('s_add_u32 s41, s40, 64')
    a('v_add_u32 v20, s41, v3')
    a('s_and_b32 s42, s29, 1')
    a('s_lshl_b32 s43, s33, 16')
    a('s_and_b32 s33, s33, 0xffff0000')
    a('s_cmp_eq_u32 s42, 0')
    a('s_cselect_b32 s33, s43, s33')
    stamp(a, 2)
    a('v_lshlrev_b32 v21, 16, v%d' % HD)
    a('v_and_b32 v22, 0xffff0000, v%d' % HD)
    a('v_add_f32 v21, s33, v21')
    a('v_cmp_eq_u32 vcc, 0, v2')
    a('v_cvt_pk_bf16_f32 v21, v21, v22')
    a('v_cndmask_b32 v%d, v%d, v21, vcc' % (HD, HD))
    HO = 84
    for i in range(4):
        a('ds_write_b128 v20, %s offset:%d' % (vr(HD + 4 * i, 4), 1024 * i))
        for d in range(4):
            prev = HP + i if d == 0 else HD + 4 * i + d - 1
            a('v_alignbit_b32 v%d, v%d, v%d, 16' % (HO + 4 * i + d, HD + 4 * i + d, prev))
        a('ds_write_b128 v20, %s offset:%d' % (vr(HO + 4 * i, 4), 4160 + 1024 * i))
    a.wait_for(*dm)
    a.wait_all(vm=False)
    a('s_barrier')
    stamp(a, 3)

    ACC = 96
    TMP = 24
    store = [('a', 32 * i) for i in range(8)] + [('v', 128 + 32 * i) for i in range(4)]
    where = {}
    for i in range(6):
        where[('A', i)] = store[i]
        where[('B', i)] = store[6 + i]
    where[('A', 6)] = where[('A', 3)]
    where[('B', 6)] = where[('B', 3)]
    where[('A', 7)] = where[('A', 4)]
    where[('B', 7)] = where[('B', 4)]

    def freg(kind, blk, rho, off=0, n=4):
        k, base = where[(kind, blk)]
        return vr(base + 4 * rho + off, n, k)

    def reads_of(kind, blk, rho):
        if kind == 'A':
            aa = 8 * blk + rho
            o = (aa & 15) * 16
            return ['ds_read2_b32 %s, v%d offset0:%d offset1:%d' % (freg(kind, blk, rho, 0, 2), AA + (aa >> 4), o, o + 1),
                    'ds_read2_b32 %s, v%d offset0:%d offset1:%d' % (freg(kind, blk, rho, 2, 2), AA + (aa >> 4), o + 2, o + 3)]
        beta = 8 * blk - rho
        return ['ds_read_b128 %s, v%d offset:%d' % (freg(kind, blk, rho), BA + (beta & 3), UB + 1024 * (beta >> 2) - 256)]

    mm = []
    for rho in range(8):
        for (al, ga) in [(0, 0), (0, 1), (0, 2), (1, 0), (1, 1), (1, 2), (2, 0), (2, 1), (2, 2)]:
            mm.append((al, ga, rho))
    for rho in range(8):
        for (al, ga) in [(0, 3), (1, 3), (3, 0), (3, 1)]:
            mm.append((al, ga, rho))
    for grp in [[(0, 4), (4, 0)], [(3, 2), (2, 3), (1, 4), (4, 1)], [(0, 5), (5, 0)],
                [(3, 3), (3, 4), (4, 3)], [(4, 2), (2, 4)], [(5, 1), (1, 5)], [(0, 6), (6, 0)],
                [(5, 2), (2, 5)], [(1, 6), (6, 1)], [(0, 7), (7, 0)]]:
        for rho in range(8):
            for (al, ga) in grp:
                mm.append((al, ga, rho))
    assert len(mm) == 288 and len(set(mm)) == 288
    lastuse = {}
    for i, (al, ga, rho) in enumerate(mm):
        lastuse[('A', al, rho)] = i
        lastuse[('B', ga, rho)] = i
    rs, seen = [], set()
    for i, (al, ga, rho) in enumerate(mm):
        for key in (('B', ga, rho), ('A', al, rho)):
            if key not in seen:
                seen.add(key)
                kind, blk, _ = key
                earliest = 0
                if blk >= 6:
                    earliest = lastuse[(kind, blk - 3, rho)] + 2
                for t in reads_of(*key):
                    rs.append((t, earliest, i))
    done_at = {}
    for i, (al, ga, rho) in enumerate(mm):
        done_at[al + ga] = i
    ev = {}
    ywr = {}

    def add(slot, fn):
        ev.setdefault(slot, []).append(fn)

    def ep_write(j):
        t = TMP + 2 * (j & 3)
        a('v_cvt_pk_bf16_f32 v%d, v%d, v%d' % (t, ACC + 4 * j, ACC + 4 * j + 1))
        a('v_cvt_pk_bf16_f32 v%d, v%d, v%d' % (t + 1, ACC + 4 * j + 2, ACC + 4 * j + 3))
        ywr[j] = a('ds_write_b64 v18, %s offset:%d' % (vr(t, 2), 4 * YP * j))

    def ep_barrier(js):
        a.wait_for(*[ywr[j] for j in js])
        a('s_barrier')

    def ep_read(j):
        a('ds_read_b64_tr_b16 %s, v19 offset:%d' % (vr(32 + 2 * (j & 3), 2), 4 * YP * j))

    def ep_gate(j, part):
        y, q = 32 + 2 * (j & 3), Q + 2 * j
        if part < 2:
            a('v_lshlrev_b32 v%d, 16, v%d' % (56 + 4 * part, y + part))
            a('v_and_b32 v%d, 0xffff0000, v%d' % (57 + 4 * part, y + part))
        elif part < 4:
            p = part - 2
            a('v_lshlrev_b32 v%d, 16, v%d' % (58 + 4 * p, q + p))
            a('v_and_b32 v%d, 0xffff0000, v%d' % (59 + 4 * p, q + p))
        elif part < 6:
            p = part - 4
            a('v_mul_f32 v%d, v%d, v%d' % (56 + 4 * p, 56 + 4 * p, 58 + 4 * p))
            a('v_mul_f32 v%d, v%d, v%d' % (57 + 4 * p, 57 + 4 * p, 59 + 4 * p))
        elif part == 6:
            a('v_cvt_pk_bf16_f32 v%d, v56, v57' % q)
            a('v_cvt_pk_bf16_f32 v%d, v60, v61' % (q + 1))
        else:
            a('s_add_u32 s35, s34, %d' % (256 * 2304 * j))
            a('buffer_store_dwordx2 %s, v5, s[36:39], s35 offen' % vr(q, 2))

    groups = [[0, 1, 2], [3], [4], [5], [6], [7]]
    busy = 0
    for js in groups:
        s0 = max(done_at[j] for j in js) + 8
        for k, j in enumerate(js):
            add(s0 + k, lambda j=j: ep_write(j))
        s1 = s0 + len(js) + 3
        add(s1, lambda js=js: ep_barrier(js))
        for k, j in enumerate(js):
            add(s1 + k, lambda j=j: ep_read(j))
        s2 = max(s1 + len(js) + 4, busy)
        for k, j in enumerate(js):
            for part in range(8):
                add(s2 + 8 * k + part, lambda j=j, part=part: ep_gate(j, part))
        busy = s2 + 8 * len(js)
    PRE = int(OPT.get('pre', 10))
    ri = 0
    for _ in range(PRE):
        a(rs[ri][0]); ri += 1
    started = set()
    for i, (al, ga, rho) in enumerate(mm):
        while ri < len(rs) and rs[ri][2] <= i:
            a(rs[ri][0]); ri += 1
        j = al + ga
        acc = vr(ACC + 4 * j, 4)
        a('%s %s, %s, %s, %s' % (mf, acc, freg('A', al, rho), freg('B', ga, rho), acc if j in started else '0'))
        started.add(j)
        if ri < len(rs) and rs[ri][1] <= i:
            a(rs[ri][0]); ri += 1
        for fn in ev.pop(i, []):
            fn()
        if i in (72, 144, 216):
            stamp(a, 3 + i // 72)
    stamp(a, 7)
    for s in sorted(ev):
        for fn in ev[s]:
            fn()
    stamp(a, 8)
    endpgm(a, 1, 10)


def k2b(a):
    mf = 'v_mfma_f32_16x16x32_bf16'
    stamp(a, 0)
    a('s_load_dwordx2 s[6:7], s[0:1], 88')
    a('s_load_dwordx2 s[12:13], s[0:1], 104')
    a('v_lshrrev_b32 v1, 6, v0')
    a('v_and_b32 v2, 63, v0')
    a('v_readfirstlane_b32 s28, v1')
    a('v_lshlrev_b32 v3, 4, v2')
    a('s_mul_i32 s29, s3, 73728')
    a('s_mul_i32 s30, s28, 9216')
    a('s_add_u32 s29, s29, s30')
    a.wait_all()
    a('s_add_u32 s12, s12, %d' % G_OFF)
    a('s_addc_u32 s13, s13, 0')
    srd(a, 16, 12, G_SIZE)
    dm = [[], []]
    for half in range(2):
        for grp in range(3):
            o = 36864 * half + 3072 * grp
            a('s_add_u32 m0, s30, %d' % o)
            a('s_add_u32 s31, s29, %d' % o)
            for i in range(3):
                dm[half].append(a('buffer_load_dwordx4 v3, s[16:19], s31 offen offset:%d lds' % (1024 * i)))
    stamp(a, 1)
    srd(a, 20, 6, 2 * ARR)
    a('v_and_b32 v4, 15, v2')
    a('v_lshrrev_b32 v5, 4, v2')
    a('v_bfe_u32 v8, v2, 2, 2')
    a('v_lshl_add_u32 v6, v5, 3, v8')
    a('v_mul_u32_u24 v6, 576, v6')
    a('v_and_b32 v9, 3, v2')
    a('v_lshl_add_u32 v6, v9, 4, v6')
    a('v_and_b32 v10, 1, v5')
    a('v_lshl_add_u32 v6, v10, 3, v6')
    a('v_xor_b32 v7, 8, v6')
    CF, SF = 16, 32
    a('s_lshl_b32 s31, s28, 4')
    a('v_add_u32 v10, s31, v4')
    a('v_cvt_f32_u32 v10, v10')
    a('v_add_f32 v10, 0.5, v10')
    a('v_mul_f32 v10, 0x3c000000, v10')
    a('v_lshlrev_b32 v11, 3, v5')
    a('v_cvt_f32_u32 v11, v11')
    a('v_mul_f32 v11, v11, v10')
    for kap in range(4):
        for i in range(0, 8, 2):
            for q in range(2):
                mul = 32 * kap + i + q
                if mul == 0:
                    a('v_mov_b32 v%d, v11' % (12 + q))
                else:
                    a('s_mov_b32 s32, %s' % f2u(float(mul)))
                    a('v_fma_f32 v%d, s32, v10, v11' % (12 + q))
            a('v_cos_f32 v48, v12')
            a('v_cos_f32 v49, v13')
            a('v_sin_f32 v50, v12')
            a('v_sin_f32 v51, v13')
            a('v_cvt_pk_bf16_f32 v%d, v48, v49' % (CF + 4 * kap + i // 2))
            a('v_cvt_pk_bf16_f32 v%d, v50, v51' % (SF + 4 * kap + i // 2))
    a('s_mul_i32 s33, s3, 57')
    a('s_lshr_b32 s33, s33, 9')
    a('s_mul_i32 s34, s33, 9')
    a('s_sub_u32 s34, s3, s34')
    a('s_lshl_b32 s35, s33, 2')
    a('v_add_u32 v12, s35, v8')
    a('s_lshl_b32 s35, s28, 8')
    a('v_lshl_add_u32 v13, v5, 6, s35')
    a('v_add_u32 v14, v12, v13')
    a('v_sub_u32 v15, v12, v13')
    a('v_add_u32 v15, %d, v15' % (16 * 127))
    a('s_lshl_b32 s35, s34, 6')
    a('s_add_u32 s36, s35, 1152')
    a('v_lshl_add_u32 v48, v9, 4, s36')
    a('s_sub_u32 s36, %d, s35' % (2304 - 16))
    a('v_lshlrev_b32 v49, 4, v9')
    a('v_sub_u32 v49, s36, v49')
    a('s_movk_i32 s37, 2304')
    AD = 52
    for i in range(4):
        for sg in range(2):
            a('v_add_u32 v50, %d, v%d' % (16 * i if sg == 0 else -16 * i, 14 + sg))
            a('v_mad_u32_u24 v%d, v50, s37, v48' % (AD + 4 * i + 2 * sg))
            a('v_sub_u32 v50, 2048, v50')
            a('v_and_b32 v50, 2047, v50')
            a('v_mad_u32_u24 v%d, v50, s37, v49' % (AD + 4 * i + 2 * sg + 1))
    PA, QA, FB = 68, 104, 140
    NB = 8
    items = [(kap, tau, part) for kap in range(4) for tau in range(9) for part in range(2)]

    def rd(n):
        kap, tau, part = items[n]
        f = FB + 4 * (n % NB)
        for h in range(2):
            a('ds_read_b64_tr_b16 %s, v%d offset:%d' % (vr(f + 2 * h, 2), 6 + part, kap * 18432 + h * 2304 + tau * 64))

    LA = 6
    nxt = 0
    for half in range(2):
        stamp(a, 2 + 2 * half)
        a.wait_for(*dm[half])
        a('s_barrier')
        stamp(a, 3 + 2 * half)
        lo, hi = 36 * half, 36 * half + 36
        for n in range(lo, hi):
            while nxt < min(hi, n + LA + 1):
                rd(nxt); nxt += 1
            kap, tau, part = items[n]
            acc = vr((QA if part else PA) + 4 * tau, 4)
            a('%s %s, %s, %s, %s' % (mf, acc, vr((SF if part else CF) + 4 * kap, 4), vr(FB + 4 * (n % NB), 4), acc if kap else '0'))
    stamp(a, 6)
    YT, ST = 172, 192
    k = 0
    for i in range(4):
        for sg in range(2):
            y = YT + 10 * sg
            for tau in range(9):
                a('%s v%d, v%d, v%d' % ('v_sub_f32' if sg else 'v_add_f32', y + tau, PA + 4 * tau + i, QA + 4 * tau + i))
            st = ST + 8 * (k % 4)
            for d in range(4):
                a('v_cvt_pk_bf16_f32 v%d, v%d, v%d' % (st + d, y + 2 * d, y + 2 * d + 1))
            a('buffer_store_dwordx4 %s, v%d, s[20:23], 0 offen' % (vr(st, 4), AD + 4 * i + 2 * sg))
            for d in range(4):
                a('v_cvt_pk_bf16_f32 v%d, v%d, v%d' % (st + 4 + d, y + 8 - 2 * d, y + 7 - 2 * d))
            a('buffer_store_dwordx4 %s, v%d, s[20:23], 0 offen' % (vr(st + 4, 4), AD + 4 * i + 2 * sg + 1))
            k += 1
    stamp(a, 7)
    endpgm(a, 1, 9)


def kd(a, name, vgpr, accum, sgpr=None):
    sgpr = sgpr or (96 if STAMP else 64)
    a.raw('.p2align 6')
    a.raw('.amdhsa_kernel ' + name)
    a.raw('  .amdhsa_next_free_vgpr %d' % vgpr)
    a.raw('  .amdhsa_next_free_sgpr %d' % sgpr)
    a.raw('  .amdhsa_accum_offset %d' % accum)
    a.raw('  .amdhsa_group_segment_fixed_size 0')
    a.raw('  .amdhsa_kernarg_size 112')
    a.raw('  .amdhsa_user_sgpr_count 2')
    a.raw('  .amdhsa_user_sgpr_kernarg_segment_ptr 1')
    a.raw('  .amdhsa_system_sgpr_workgroup_id_x 1')
    a.raw('.end_amdhsa_kernel')


def main():
    a = Asm()
    ref = open('cdna_kernels/%s.s.ref' % NAME).read().splitlines()
    for l in ref:
        if l.startswith(';   offset') or l.startswith('; Kernarg'):
            a.raw(l)
    LL = {'1': '; @launch kernel=k1_kernel grid=(272,1,1) block=(256,1,1) lds=55424',
          '2': '; @launch kernel=k2_kernel grid=(184,1,1) block=(256,1,1) lds=73728',
          'r': '; @launch kernel=r_kernel grid=(1,1,1) block=(64,1,1) lds=0',
          'e': '; @launch kernel=e_kernel grid=(8,1,1) block=(64,1,1) lds=0'}
    for ch in OPT.get('list', '12'):
        a.raw(LL[ch])
    a.raw('.amdgcn_target "amdgcn-amd-amdhsa--gfx950"')
    a.raw('.text')
    a.raw('.globl k1_kernel')
    a.raw('.p2align 8')
    a.raw('.type k1_kernel,@function')
    a.label('k1_kernel')
    a('s_cmp_lt_u32 s2, 128')
    a('s_cbranch_scc1 L_k1b')
    a('s_cmp_ge_u32 s2, 272')
    a('s_cbranch_scc1 L_k1_exit')
    k1a(a)
    a.label('L_k1_exit')
    a('s_endpgm')
    a.reset_state()
    a.raw('.p2align 6')
    a.label('L_k1b')
    k1b(a)
    a.reset_state()
    a.raw('.globl k2_kernel')
    a.raw('.p2align 8')
    a.raw('.type k2_kernel,@function')
    a.label('k2_kernel')
    a('s_cmp_ge_u32 s2, 144')
    a('s_cbranch_scc1 L_k2b')
    a('s_and_b32 s4, s2, 7')
    a('s_lshr_b32 s5, s2, 3')
    a('s_lshl_b32 s3, s4, 4')
    a('s_add_u32 s3, s3, s5')
    a('s_lshl_b32 s4, s4, 1')
    a('s_add_u32 s4, s4, s5')
    a('s_add_u32 s4, s4, 112')
    a('s_cmp_lt_u32 s5, 16')
    a('s_cselect_b32 s3, s3, s4')
    k2a(a)
    a.reset_state()
    a.raw('.p2align 6')
    a.label('L_k2b')
    a('s_sub_u32 s3, s2, 144')
    a('s_cmp_ge_u32 s3, 36')
    a('s_cbranch_scc1 L_k2_exit')
    k2b(a)
    a.label('L_k2_exit')
    a('s_endpgm')
    if 'e' in OPT.get('list', ''):
        a.raw('.globl e_kernel')
        a.raw('.p2align 8')
        a.raw('.type e_kernel,@function')
        a.label('e_kernel')
        a('s_endpgm')
    if 'r' in OPT.get('list', ''):
        def soff(spec):
            k, wg, i = map(int, spec.split(':'))
            return STAMP_OFF + k * 512 * 256 + wg * 256 + 4 * i
        a.raw('.globl r_kernel')
        a.raw('.p2align 8')
        a.raw('.type r_kernel,@function')
        a.label('r_kernel')
        for l in ['s_memrealtime s[8:9]', 's_cmp_lg_u32 s2, 0', 's_cbranch_scc1 L_r_end', 's_load_dwordx2 s[4:5], s[0:1], 104', 's_waitcnt lgkmcnt(0)',
                  's_mov_b32 s6, %d' % soff(OPT['ra']), 's_load_dword s10, s[4:5], s6',
                  's_mov_b32 s7, %d' % soff(OPT['rb'] if OPT['rb'] != 'now' else OPT['ra']), 's_load_dword s11, s[4:5], s7', 's_waitcnt lgkmcnt(0)']:
            a.raw('    ' + l)
        if OPT['rb'] == 'now':
            a.raw('    s_mov_b32 s11, s8')
        for l in ['s_sub_u32 s12, s11, s10', 's_min_u32 s12, s12, 5000', 's_lshl_b32 s12, s12, 2', 's_memrealtime s[14:15]', 's_waitcnt lgkmcnt(0)']:
            a.raw('    ' + l)
        a.label('L_r_spin')
        for l in ['s_memrealtime s[16:17]', 's_waitcnt lgkmcnt(0)', 's_sub_u32 s18, s16, s14', 's_cmp_lt_u32 s18, s12', 's_cbranch_scc1 L_r_spin']:
            a.raw('    ' + l)
        a.label('L_r_end')
        a.raw('    s_endpgm')
    a.raw('.section .rodata,"a"')
    if 'r' in OPT.get('list', ''):
        kd(a, 'r_kernel', 8, 8)
    if 'e' in OPT.get('list', ''):
        kd(a, 'e_kernel', 8, 8)
    kd(a, 'k1_kernel', 256, 256)
    kd(a, 'k2_kernel', 512, 256)
    out = sys.argv[1] if len(sys.argv) > 1 else 'cdna_kernels/%s.s' % NAME
    open(out, 'w').write(a.text())
    print('wrote', out, 'lines', len(a.out), 'auto nops', a.nops)


main()
```

```python
import math, sys
from asmlib import Asm, vr, f2u

NAME = 'concat_heads__ssm_conv_h3__spectral_fnet__prompt'
ARR = 2359296
G_OFF = ARR
G_SIZE = 36 * 128 * 576
PITCHG = 4640
Q_OFF = G_OFF + G_SIZE

OPT = dict(a.split('=') for a in sys.argv[2:] if '=' in a)


STAMP = int(OPT.get('stamp', 0))
FL = {'p': '', 's': ' sc1', 'n': ' nt', 'b': ' sc0 sc1', 'x': ' sc1 nt', 'z': ' sc0'}
ST1A, ST1B, ST2A, ST2B = [FL[c] for c in OPT.get('st', 'ppps')]
STAMP_OFF = 16 << 20


CURK = [0]


def stamp_on():
    return STAMP and str(CURK[0]) in OPT.get('sk', '01')


def stamp(a, i):
    if stamp_on():
        a.raw('    %s s[%d:%d]' % ('s_memtime' if STAMP == 2 else 's_memrealtime', 64 + 2 * i, 65 + 2 * i))


def endpgm(a, kern, n):
    if stamp_on():
        a.raw('    s_waitcnt vmcnt(0)')
        stamp(a, n - 1)
        a.raw('    s_load_dwordx2 s[96:97], s[0:1], 104')
        a.raw('    s_waitcnt lgkmcnt(0)')
        a.raw('    s_and_b32 s97, s97, 0xffff')
        a.raw('    s_mov_b32 s98, 0x10000000')
        a.raw('    s_mov_b32 s99, 0x20000')
        a.raw('    s_lshl_b32 s100, s2, 10')
        a.raw('    s_add_u32 s100, s100, %d' % (STAMP_OFF + kern * 512 * 1024))
        a.raw('    v_lshrrev_b32 v1, 6, v0')
        a.raw('    v_lshlrev_b32 v1, 6, v1')
        a.raw('    s_mov_b64 exec, 1')
        for i in range(n):
            a.raw('    v_mov_b32 v2, s%d' % (64 + 2 * i))
            a.raw('    buffer_store_dword v2, v1, s[96:99], s100 offen offset:%d' % (4 * i))
            a.raw('    s_nop 2')
    a('s_endpgm')


def srd(a, d, base, size):
    a('s_mov_b32 s%d, s%d' % (d, base))
    a('s_and_b32 s%d, s%d, 0xffff' % (d + 1, base + 1))
    a('s_mov_b32 s%d, %d' % (d + 2, size))
    a('s_mov_b32 s%d, 0x20000' % (d + 3))


MF = 'v_mfma_f32_16x16x32_bf16'


def k1a(a):
    a.comment('---- K1/A: kv product transposed into ws, q re-tiled ----')
    stamp(a, 0)
    a('s_mul_i32 s32, s31, %d' % (16 * 1152))
    a('s_lshl_b32 s33, s29, 7')
    a('s_add_u32 s32, s32, s33')
    a('s_sub_u32 s32, s32, %d' % (4 * 1152))
    a('v_lshrrev_b32 v3, 3, v2')
    a('v_and_b32 v4, 7, v2')
    a('v_mul_u32_u24 v3, 1152, v3')
    a('v_lshl_add_u32 v3, v4, 4, v3')
    a('v_add_u32 v3, s32, v3')
    a('v_add_u32 v4, 9216, v3')
    a('v_add_u32 v5, 4608, v3')
    a('s_mov_b32 s35, 9216')
    a('s_mov_b32 s14, %d' % ARR)
    a('s_mov_b32 s15, 0x20000')
    a('s_mov_b32 s18, %d' % ARR)
    a('s_mov_b32 s19, 0x20000')
    a('s_mov_b32 m0, s34')
    a.raw('    s_waitcnt lgkmcnt(0)')
    a('s_mov_b32 s12, s6')
    a('s_and_b32 s13, s7, 0xffff')
    dm = []
    dm.append(a('buffer_load_dwordx4 v3, s[12:15], 0 offen lds'))
    a('s_add_u32 m0, s34, 1024')
    a('s_mov_b32 s16, s8')
    dm.append(a('buffer_load_dwordx4 v4, s[12:15], 0 offen lds'))
    a('s_add_u32 m0, s34, 2048')
    a('s_mov_b32 exec_hi, 0')
    dm.append(a('buffer_load_dwordx4 v4, s[12:15], s35 offen lds'))
    a('s_mov_b32 exec_hi, -1')
    a('s_add_u32 m0, s34, 3072')
    a('s_and_b32 s17, s9, 0xffff')
    dm.append(a('buffer_load_dwordx4 v5, s[16:19], 0 offen lds'))
    a('s_add_u32 m0, s34, 4096')
    a('v_lshlrev_b32 v6, 3, v2')
    dm.append(a('buffer_load_dwordx4 v5, s[16:19], s35 offen lds'))
    stamp(a, 1)
    srd(a, 24, 10, 4608)
    a('s_lshl_b32 s33, s29, 9')
    a('buffer_load_dwordx2 v[8:9], v6, s[24:27], s33 offen')
    srd(a, 48, 4, ARR)
    a('v_and_b32 v6, 48, v2')
    a('v_xor_b32 v60, v5, v6')
    a('v_xor_b32 v61, 64, v60')
    dq = []
    for i in range(2):
        a('s_add_u32 m0, s34, %d' % (5120 + 1024 * i))
        dq.append(a('buffer_load_dwordx4 v%d, s[48:51], %s offen lds' % (60 + i, 's35' if i else '0')))
    if int(OPT.get('hpf', 0)):
        a('s_load_dwordx2 s[56:57], s[0:1], 32')
        a('s_lshl_b32 s60, s29, 7')
        a('s_add_u32 s60, s60, s31')
        a('s_lshl_b32 s60, s60, 11')
        a('v_lshlrev_b32 v6, 5, v2')
        a('s_mov_b32 s58, %d' % ARR)
        a('s_mov_b32 s59, 0x20000')
        a('s_and_b32 s57, s57, 0xffff')
        a('buffer_load_dword v70, v6, s[56:59], s60 offen')
    srd(a, 20, 46, ARR)
    a('s_add_u32 s46, s46, %d' % Q_OFF)
    a('s_addc_u32 s47, s47, 0')
    srd(a, 52, 46, ARR)
    a('v_and_b32 v6, 7, v2')
    a('v_lshrrev_b32 v7, 4, v2')
    a('v_xor_b32 v7, v7, v6')
    a('v_lshlrev_b32 v7, 4, v7')
    a('v_lshl_add_u32 v62, v6, 8, v7')
    a('v_and_b32 v7, 8, v2')
    a('s_add_u32 s41, s34, 5120')
    a('v_add3_u32 v62, v62, v7, s41')
    a('v_xor_b32 v63, 64, v62')
    a('v_lshrrev_b32 v7, 3, v2')
    a('v_lshlrev_b32 v7, 14, v7')
    a('v_lshl_add_u32 v64, v6, 4, v7')
    a('v_bfe_u32 v6, v2, 2, 2')
    a('v_lshlrev_b32 v6, 7, v6')
    a('v_lshrrev_b32 v7, 4, v2')
    a('v_lshl_add_u32 v6, v7, 5, v6')
    a('v_and_b32 v7, 3, v2')
    a('v_lshl_add_u32 v6, v7, 3, v6')
    a('v_add_u32 v6, s34, v6')
    a('s_bfe_u32 s39, s31, 0x20001')
    a('v_xor_b32 v7, s39, v7')
    a('v_lshlrev_b32 v7, 4, v7')
    a('v_lshrrev_b32 v10, 2, v2')
    a('v_lshl_add_u32 v7, v10, 14, v7')
    a('s_lshl_b32 s38, s29, 18')
    a('s_lshl_b32 s39, s31, 7')
    a('s_add_u32 s38, s38, s39')
    a('s_add_u32 s41, s38, 131072')
    a('s_mov_b32 s40, 0xffff')
    a.wait_for(*dm)
    stamp(a, 2)
    K, V = 16, 26
    for i in range(5):
        a('ds_read_b64_tr_b16 %s, v6 offset:%d' % (vr(K + 2 * i, 2), 512 * i))
    for i in range(4):
        a('ds_read_b64_tr_b16 %s, v6 offset:%d' % (vr(V + 2 * i, 2), 3072 + 512 * i))
    a('v_and_b32 v10, 0xffff0000, v9')
    a('v_bfi_b32 v11, s40, v9, v8')
    a('v_and_b32 v12, 0xffff, v8')
    a('v_alignbit_b32 v13, v9, v9, 16')
    a('v_alignbit_b32 v14, v8, v8, 16')
    E, U, OUT = 34, 42, 52
    for i in range(2):
        ms = [4 * i + d for d in range(4)]
        for d, m in enumerate(ms):
            a('v_dot2_f32_bf16 v%d, v%d, v10, 0' % (E + 2 * d, K + m))
            a('v_dot2_f32_bf16 v%d, v%d, v13, 0' % (E + 2 * d + 1, K + m + 1))
        for d, m in enumerate(ms):
            a('v_dot2c_f32_bf16 v%d, v%d, v11' % (E + 2 * d, K + m + 1))
            a('v_dot2c_f32_bf16 v%d, v%d, v14' % (E + 2 * d + 1, K + m + 2))
        for d, m in enumerate(ms):
            a('v_dot2c_f32_bf16 v%d, v%d, v12' % (E + 2 * d, K + m + 2))
        for d, m in enumerate(ms):
            a('v_lshlrev_b32 v%d, 16, v%d' % (U + 2 * d, V + m))
            a('v_and_b32 v%d, 0xffff0000, v%d' % (U + 2 * d + 1, V + m))
        for d, m in enumerate(ms):
            a('v_mul_f32 v%d, v%d, v%d' % (U + 2 * d, E + 2 * d, U + 2 * d))
            a('v_mul_f32 v%d, v%d, v%d' % (U + 2 * d + 1, E + 2 * d + 1, U + 2 * d + 1))
        for d, m in enumerate(ms):
            a('v_cvt_pk_bf16_f32 v%d, v%d, v%d' % (OUT + 4 * i + 3 - d, U + 2 * d + 1, U + 2 * d))
        a('buffer_store_dwordx4 %s, v7, s[20:23], s38 offen offset:%d' % (vr(OUT + 4 * i, 4), 64 * i) + ST1A)
    a.wait_for(*dq)
    for i in range(2):
        a('ds_read2_b64 %s, v%d offset0:0 offset1:16' % (vr(16 + 4 * i, 4), 62 + i))
    for i in range(2):
        a('buffer_store_dwordx4 %s, v64, s[52:55], %s offen' % (vr(16 + 4 * i, 4), 's41' if i else 's38') + ST1A)
    stamp(a, 3)
    endpgm(a, 0, 5)


def k1b(a):
    UU, TT = 18432, 36864
    stamp(a, 0)
    a('v_lshlrev_b32 v3, 4, v2')
    a('v_add_u32 v7, 146304, v3')
    a('v_cmp_le_u32 vcc, 8, v2')
    a('s_lshl_b32 s29, s28, 8')
    a('s_add_u32 s29, s29, s2')
    a('v_cndmask_b32 v4, v3, v7, vcc')
    a('s_mul_i32 s29, s29, 1152')
    a('s_mul_i32 s38, s28, 2304')
    a('s_mov_b32 s14, %d' % ARR)
    a('s_mov_b32 s15, 0x20000')
    a('s_mov_b32 m0, s38')
    a.raw('    s_waitcnt lgkmcnt(0)')
    a('s_mov_b32 s12, s44')
    a('s_and_b32 s13, s45, 0xffff')
    dm = []
    dm.append(a('buffer_load_dwordx4 v3, s[12:15], s29 offen lds'))
    dm.append(a('buffer_load_dwordx4 v4, s[12:15], s29 offen offset:1024 lds'))
    a('s_mov_b64 exec, 0xffff')
    dm.append(a('buffer_load_dwordx4 v7, s[12:15], s29 offen offset:2048 lds'))
    a('s_mov_b64 exec, -1')
    stamp(a, 1)
    a('s_add_u32 s10, s46, %d' % G_OFF)
    a('s_addc_u32 s11, s47, 0')
    srd(a, 16, 10, G_SIZE)
    XA = 8
    a('v_and_b32 v3, 31, v2')
    a('v_lshrrev_b32 v4, 5, v2')
    a('v_mul_u32_u24 v5, 7, v3')
    a('v_mul_u32_u24 v6, 57, v5')
    a('v_lshrrev_b32 v6, 9, v6')
    a('v_mul_u32_u24 v6, 9, v6')
    a('v_sub_u32 v5, v5, v6')
    a('v_mul_u32_u24 v6, 1152, v4')
    a('v_lshl_add_u32 v6, v3, 2, v6')
    a('v_add_u32 v6, s38, v6')
    a('v_lshlrev_b32 v5, 7, v5')
    for j in range(9):
        if j:
            a('v_add_u32 v7, %d, v5' % (128 * j))
            a('v_add_u32 v32, %d, v5' % (128 * j - 1152))
            a('v_min_u32 v7, v7, v32')
            a('v_add_u32 v%d, v7, v6' % (XA + j))
        else:
            a('v_add_u32 v%d, v5, v6' % XA)
    a('v_lshrrev_b32 v6, 2, v3')
    a('v_xor_b32 v6, s28, v6')
    a('v_lshlrev_b32 v6, 4, v6')
    a('v_lshl_add_u32 v6, v4, 7, v6')
    a('v_and_b32 v7, 3, v3')
    a('v_lshl_add_u32 v6, v7, 2, v6')
    a('s_lshl_b32 s39, s28, 8')
    a('s_add_u32 s39, s39, %d' % UU)
    a('v_add_u32 v17, s39, v6')
    a('v_and_b32 v3, 15, v2')
    a('v_lshrrev_b32 v4, 4, v2')
    a('v_lshrrev_b32 v6, 1, v3')
    a('v_xor_b32 v6, v6, v4')
    a('v_lshlrev_b32 v6, 4, v6')
    a('v_lshl_add_u32 v6, v3, 7, v6')
    a('v_add_u32 v18, %d, v6' % UU)
    a('v_xor_b32 v19, 64, v18')
    a('s_and_b32 s39, s28, 3')
    a('s_lshl_b32 s39, s39, 4')
    a('v_add_u32 v5, s39, v3')
    a('v_mul_u32_u24 v6, 9, v5')
    a('v_mul_u32_u24 v7, %d, v4' % PITCHG)
    a('v_add_u32 v7, %d, v7' % TT)
    a('s_mov_b32 s40, 0x80008000')
    a('v_mov_b32 v33, s40')
    a('s_lshr_b32 s30, s28, 2')
    a('s_lshl_b32 s39, s30, 7')
    for k in range(3):
        if k < 2:
            a('s_add_u32 s39, s39, 64')
            a('v_add_u32 v32, s39, v6')
            a('v_subrev_u32 v34, 576, v32')
            a('v_min_u32 v32, v32, v34')
            e = 32
        else:
            e = 6
        a('v_sub_u32 v34, 576, v%d' % e)
        a('v_cmp_lt_u32 vcc, v34, v%d' % e)
        a('v_min_u32 v32, v%d, v34' % e)
        a('v_lshl_add_u32 v%d, v32, 4, v7' % (20 + k))
        a('v_cndmask_b32 v%d, 0, v33, vcc' % (23 + k))
    a('s_lshl_b32 s39, s28, 2')
    a('v_add_u32 v32, s39, v4')
    a('v_and_b32 v34, 3, v2')
    a('v_bfe_u32 v35, v2, 2, 2')
    a('v_mul_u32_u24 v36, %d, v34' % PITCHG)
    a('v_lshl_add_u32 v36, v35, 7, v36')
    a('v_add_u32 v36, %d, v36' % TT)
    a('v_mul_u32_u24 v37, %d, v35' % (9 * 73728))
    a('v_lshl_add_u32 v37, v34, 4, v37')
    a('s_mul_i32 s42, s2, 576')
    a('s_mov_b32 s43, %d' % (73728 - 576))
    for k in range(3):
        if k:
            a('v_add_u32 v32, 32, v32')
        if k == 2:
            a('v_cmp_lt_u32 vcc, 80, v32')
            a('v_min_u32 v32, 80, v32')
        a('v_mul_u32_u24 v38, 57, v32')
        a('v_lshrrev_b32 v38, 9, v38')
        a('v_mad_u32_u24 v39, v38, 23, v32')
        a('v_lshl_add_u32 v%d, v39, 4, v36' % (26 + k))
        a('v_lshl_add_u32 v39, v32, 6, v37')
        a('v_mad_u32_u24 v%d, v38, s43, v39' % (29 + k))
        if k == 2:
            a('v_cndmask_b32 v31, v31, v33, vcc')
    CF, SF, NF = 40, 48, 56
    a('v_cvt_f32_u32 v72, v5')
    a('v_mul_f32 v72, 0x3c800000, v72')
    a('v_lshlrev_b32 v73, 3, v4')
    a('v_cvt_f32_u32 v73, v73')
    a('v_mul_f32 v74, v73, v72')
    a('v_add_f32 v75, v74, v72')
    a('v_add_f32 v73, v72, v72')
    for kap in range(2):
        for i in range(0, 8, 2):
            a('v_cos_f32 v78, v74')
            a('v_cos_f32 v79, v75')
            a('v_sin_f32 v80, v74')
            a('v_sin_f32 v81, v75')
            if i < 6:
                a('v_add_f32 v74, v74, v73')
                a('v_add_f32 v75, v75, v73')
            elif kap == 0:
                a('v_fmamk_f32 v74, v72, 0x41d00000, v74')
                a('v_fmamk_f32 v75, v72, 0x41d00000, v75')
            a('v_cvt_pk_bf16_f32 v%d, v78, v79' % (CF + 4 * kap + i // 2))
            a('v_cvt_pk_bf16_f32 v%d, v80, v81' % (SF + 4 * kap + i // 2))
            a('v_xor_b32 v%d, s40, v%d' % (NF + 4 * kap + i // 2, SF + 4 * kap + i // 2))
    A1, A2 = 64, 68
    a('v_cvt_f32_u32 v72, v3')
    a('v_cvt_f32_u32 v73, s2')
    a('v_add_f32 v74, 0xc1000000, v72')
    a('v_mul_f32 v73, v73, v74')
    a('v_mul_f32 v73, 0x3a000000, v73')
    a('v_mul_f32 v72, 0x3d800000, v72')
    a('v_lshlrev_b32 v74, 2, v4')
    a('v_cvt_f32_u32 v74, v74')
    a('v_fma_f32 v84, v74, v72, v73')
    a('v_add_f32 v85, v84, v72')
    a('v_add_f32 v86, v85, v72')
    a('v_add_f32 v87, v86, v72')
    for i in range(4):
        a('v_cos_f32 v%d, v%d' % (72 + i, 84 + i))
        a('v_sin_f32 v%d, v%d' % (76 + i, 84 + i))
    a('v_cvt_pk_bf16_f32 v84, v72, v73')
    a('v_cvt_pk_bf16_f32 v85, v74, v75')
    a('v_cvt_pk_bf16_f32 v86, v76, v77')
    a('v_cvt_pk_bf16_f32 v87, v78, v79')
    a('v_xor_b32 v88, s40, v86')
    a('v_xor_b32 v89, s40, v87')
    a('s_bitcmp1_b32 s2, 3')
    a('s_cselect_b64 vcc, -1, 0')
    re_f, im_f = [84, 85, 86, 87], [88, 89, 84, 85]
    for i in range(4):
        a('v_cndmask_b32 v%d, v%d, v%d, vcc' % (A1 + i, re_f[i], im_f[i]))
        a('v_cndmask_b32 v%d, v%d, v%d, vcc' % (A2 + i, im_f[i], re_f[i]))
    c = [math.cos(2 * math.pi * k / 9) for k in range(5)]
    s = [math.sin(2 * math.pi * k / 9) for k in range(5)]
    cs = {'c1': (46, c[1]), 'c2': (47, c[2]), 'c4': (48, c[4]), 'h': (49, -0.5),
          's1': (50, s[1]), 's2': (51, s[2]), 's3': (52, s[3]), 's4': (53, s[4])}
    for r, val in cs.values():
        a('s_mov_b32 s%d, %s' % (r, f2u(val)))

    def cst(nm):
        r = cs[nm][0]
        return 's[%d:%d]' % (r & ~1, (r & ~1) + 1), r & 1

    def pfma(d, x, nm, acc, negc=False, nega=False):
        sp, hi = cst(nm)
        t = 'v_pk_fma_f32 %s, %s, %s, %s op_sel:[0,%d,0] op_sel_hi:[1,%d,1]' % (vr(d, 2), vr(x, 2), sp, vr(acc, 2), hi, hi)
        if negc or nega:
            t += ' neg_lo:[0,%d,%d] neg_hi:[0,%d,%d]' % (negc, nega, negc, nega)
        a(t)

    def pmul(d, x, nm, negc=False):
        sp, hi = cst(nm)
        t = 'v_pk_mul_f32 %s, %s, %s op_sel:[0,%d] op_sel_hi:[1,%d]' % (vr(d, 2), vr(x, 2), sp, hi, hi)
        if negc:
            t += ' neg_lo:[0,1] neg_hi:[0,1]'
        a(t)

    def padd(d, x, y, neg=False):
        a('v_pk_add_f32 %s, %s, %s%s' % (vr(d, 2), vr(x, 2), vr(y, 2), ' neg_lo:[0,1] neg_hi:[0,1]' if neg else ''))

    stamp(a, 2)
    a.wait_for(*dm)
    stamp(a, 3)
    XR, Z, AB, OU = 84, 94, 112, 128
    for j in range(9):
        a('ds_read_b32 v%d, v%d' % (XR + j, XA + j))
    for j in range(9):
        a('v_lshlrev_b32 v%d, 16, v%d' % (Z + 2 * j, XR + j))
        a('v_and_b32 v%d, 0xffff0000, v%d' % (Z + 2 * ((j + 1) % 9) + 1, XR + j))
    z = lambda k: Z + 2 * k
    A = lambda j: AB + 2 * (j - 1)
    B = lambda j: AB + 8 + 2 * (j - 1)
    o = lambda cidx: OU + 2 * cidx
    M, N, T, W = OU + 18, OU + 20, OU + 22, OU + 24

    def put(cidx):
        a('v_cvt_pk_bf16_f32 v%d, v%d, v%d' % (XR + cidx, o(cidx), o(cidx) + 1))
        a('ds_write_b32 v17, v%d offset:%d' % (XR + cidx, 2048 * cidx))
    for j in (4, 3, 2, 1):
        padd(A(j), z(j), z(9 - j))
        padd(B(j), z(j), z(9 - j), neg=True)
    pfma(M, A(3), 'h', z(0))
    padd(N, z(0), A(3))
    padd(T, A(1), A(2))
    pmul(W, B(3), 's3', negc=True)
    padd(o(6), B(1), B(2), neg=True)
    padd(T, T, A(4))
    pfma(o(1), A(1), 'c1', M)
    padd(o(6), o(6), B(4))
    padd(o(0), N, T)
    pfma(o(5), T, 'h', N)
    pmul(o(6), o(6), 's3', negc=True)
    pfma(o(1), A(2), 'c2', o(1))
    put(0)
    pfma(o(2), B(1), 's1', W, negc=True)
    put(5)
    pfma(o(1), A(4), 'c4', o(1))
    put(6)
    pfma(o(2), B(2), 's2', o(2), negc=True)
    pfma(o(3), A(1), 'c2', M)
    put(1)
    pfma(o(2), B(4), 's4', o(2), negc=True)
    pfma(o(3), A(2), 'c4', o(3))
    pfma(o(4), B(1), 's2', W, negc=True, nega=True)
    put(2)
    pfma(o(3), A(4), 'c1', o(3))
    pfma(o(4), B(2), 's4', o(4), negc=True)
    pfma(o(7), A(1), 'c4', M)
    put(3)
    pfma(o(4), B(4), 's1', o(4))
    pfma(o(7), A(2), 'c1', o(7))
    pfma(o(8), B(1), 's4', W, negc=True)
    put(4)
    pfma(o(7), A(4), 'c2', o(7))
    pfma(o(8), B(2), 's1', o(8))
    pfma(o(8), B(4), 's2', o(8))
    put(7)
    put(8)
    a('s_cmp_lg_u32 s30, 0')
    a.wait_all(vm=False)
    a('s_barrier')
    stamp(a, 4)
    a('s_cbranch_scc1 L_k1b_pg1')
    UF, ZA, BF = 84, 124, 148
    GA = [72, 160, 84]

    def stage(ps):
        loc = {}
        n = 0
        for p in ps:
            for cidx in ([0] if p == 0 else [2 * p - 1, 2 * p]):
                loc[cidx] = UF + 8 * n
                n += 1
                for kap in range(2):
                    a('ds_read_b128 %s, v%d offset:%d' % (vr(loc[cidx] + 4 * kap, 4), 18 + kap, 2048 * cidx))
        uf = lambda cidx, kap: vr(loc[cidx] + 4 * kap, 4)
        slot = lambda p: 2 if p == 0 else (p - 1) & 1

        def h2(k):
            p = ps[k]
            zr, zi = vr(ZA + 8 * k, 4), vr(ZA + 8 * k + 4, 4)
            if p == 0:
                seq = [(zr, 0, 0, CF), (zi, 0, 0, NF), (zr, 0, 1, CF), (zi, 0, 1, NF)]
            else:
                cr, ci = 2 * p - 1, 2 * p
                seq = [(zr, cr, 0, CF), (zi, cr, 0, NF), (zr, cr, 1, CF), (zi, cr, 1, NF),
                       (zr, ci, 0, SF), (zi, ci, 0, CF), (zr, ci, 1, SF), (zi, ci, 1, CF)]
            seen = set()
            for d, cidx, kap, cf in seq:
                a('%s %s, %s, %s, %s' % (MF, d, uf(cidx, kap), vr(cf + 4 * kap, 4), d if d in seen else '0'))
                seen.add(d)

        def pack(k):
            zz = ZA + 8 * k
            for i in range(4):
                a('v_cvt_pk_bf16_f32 v%d, v%d, v%d' % (BF + 4 * k + i, zz + 2 * i, zz + 2 * i + 1))
            for i in (2, 3):
                a('v_xor_b32 v%d, v%d, v%d' % (BF + 4 * k + i, 23 + slot(ps[k]), BF + 4 * k + i))

        def seqst(k):
            a('%s %s, %s, %s, 0' % (MF, vr(GA[k], 4), vr(A1, 4), vr(BF + 4 * k, 4)))
            a('%s %s, %s, %s, 0' % (MF, vr(GA[k] + 4, 4), vr(A2, 4), vr(BF + 4 * k, 4)))

        def fin(k):
            for i in range(4):
                a('v_cvt_pk_bf16_f32 v%d, v%d, v%d' % (ZA + 8 * k + i, GA[k] + 2 * i, GA[k] + 2 * i + 1))
            a('ds_write_b128 v%d, %s' % (20 + slot(ps[k]), vr(ZA + 8 * k, 4)))
        if len(ps) == 3:
            h2(0); h2(1); pack(0); seqst(0); h2(2); pack(1); seqst(1); fin(0); pack(2); seqst(2); fin(1); fin(2)
        else:
            h2(0); h2(1); pack(0); seqst(0); pack(1); seqst(1); fin(0); fin(1)
        a.wait_all(vm=False)

    stage([0, 1, 2])
    a('s_branch L_k1b_join')
    a.reset_state()
    a.label('L_k1b_pg1')
    stage([3, 4])
    a.reset_state()
    a.label('L_k1b_join')
    a('s_barrier')
    stamp(a, 5)
    RB = 84
    for k in range(3):
        a('ds_read_b64_tr_b16 %s, v%d' % (vr(RB + 4 * k, 2), 26 + k))
        a('ds_read_b64_tr_b16 %s, v%d offset:8' % (vr(RB + 4 * k + 2, 2), 26 + k))
    for k in range(3):
        a('buffer_store_dwordx4 %s, v%d, s[16:19], s42 offen' % (vr(RB + 4 * k, 4), 29 + k) + ST1B)
    stamp(a, 6)
    endpgm(a, 0, 8)


def k2a(a):
    UB, HB, YB = 2304, 18688, 51968
    HW, YP = 8320, 784
    stamp(a, 0)
    a('v_lshlrev_b32 v3, 4, v2')
    a('s_and_b32 s26, s28, 3')
    a('s_lshr_b32 s27, s28, 2')
    a('s_lshl_b32 s29, s3, 2')
    a('s_add_u32 s29, s29, s26')
    a('s_lshl_b32 s30, s29, 12')
    a('s_lshl_b32 s31, s27, 11')
    a('s_add_u32 s30, s30, s31')
    a('s_lshl_b32 s31, s28, 11')
    a('s_lshl_b32 s44, s3, 14')
    a('s_add_u32 s35, s44, s31')
    a('s_add_u32 m0, s31, %d' % UB)
    a('s_lshr_b32 s32, s29, 1')
    a('s_lshl_b32 s32, s32, 2')
    a('s_max_u32 s45, s30, 4')
    a('s_sub_u32 s45, s45, 4')
    a('s_mov_b32 s18, %d' % ARR)
    a('s_mov_b32 s19, 0x20000')
    a('s_mov_b32 s22, %d' % ARR)
    a('s_mov_b32 s23, 0x20000')
    a.raw('    s_waitcnt lgkmcnt(0)')
    a('s_mov_b32 s16, s8')
    a('s_and_b32 s17, s9, 0xffff')
    HD, HP, HO = 64, 72, 76
    for i in range(2):
        a('buffer_load_dwordx4 %s, v3, s[16:19], s30 offen offset:%d' % (vr(HD + 4 * i, 4), 1024 * i))
    a('s_mov_b32 s20, s12')
    a('s_and_b32 s21, s13, 0xffff')
    dm = []
    for i in range(2):
        dm.append(a('buffer_load_dwordx4 v3, s[20:23], s35 offen offset:%d lds' % (1024 * i)))
    a('s_load_dword s33, s[10:11], s32')
    a('s_load_dword s46, s[8:9], s45')
    stamp(a, 1)
    a('s_add_u32 s12, s12, %d' % Q_OFF)
    a('s_addc_u32 s13, s13, 0')
    srd(a, 48, 12, ARR)
    srd(a, 36, 6, 2 * ARR)
    Q, ACC = 24, 32
    AA, BA, YW, YR, SA, QA = 4, 8, 12, 13, 14, 15
    a('v_and_b32 v1, 255, v0')
    a('v_lshlrev_b32 v%d, 3, v1' % QA)
    a('v_mul_u32_u24 v%d, 2304, v1' % SA)
    a('s_lshl_b32 s34, s3, 3')
    a('v_mov_b32 v16, 0')
    a('v_lshlrev_b32 v20, 2, v0')
    a('ds_write_b32 v20, v16 offset:256')
    a('v_lshlrev_b32 v20, 2, v2')
    a('ds_write_b32 v20, v16')
    a('s_mul_i32 s40, s26, %d' % HW)
    a('s_add_u32 s40, s40, %d' % HB)
    a('s_mul_i32 s41, s27, 4160')
    a('s_add_u32 s41, s41, s40')
    a('v_and_b32 v21, 15, v2')
    a('v_lshl_add_u32 v20, v21, 2, s41')
    a('ds_write_b32 v20, v16')
    a('v_lshrrev_b32 v22, 4, v2')
    a('v_lshl_add_u32 v16, v22, 3, v21')
    a('v_and_b32 v17, 1, v21')
    a('v_sub_u32 v16, v16, v17')
    a('v_lshlrev_b32 v16, 1, v16')
    a('v_mul_u32_u24 v17, 4160, v17')
    a('v_sub_u32 v16, v16, v17')
    a('s_lshl_b32 s41, s27, 8')
    a('s_add_u32 s41, s41, s40')
    a('s_add_u32 s41, s41, %d' % (64 + 4160 - 28))
    a('v_add_u32 v%d, s41, v16' % AA)
    for i in range(1, 4):
        a('v_add_u32 v%d, %d, v%d' % (AA + i, 1024 * i, AA))
    a('v_lshlrev_b32 v16, 1, v21')
    a('v_sub_u32 v16, v16, v22')
    a('s_lshl_b32 s41, s27, 10')
    a('s_sub_u32 s41, 1024, s41')
    for b in range(4):
        a('v_add_u32 v17, %d, v16' % (4 * b + 1 + 4))
        a('v_lshrrev_b32 v18, 2, v17')
        a('v_add_u32 v18, 3, v18')
        a('v_xor_b32 v18, s26, v18')
        a('v_and_b32 v18, 3, v18')
        a('v_lshl_add_u32 v18, v18, 4, s41')
        a('v_lshl_add_u32 v%d, v17, 6, v18' % (BA + b))
    a('v_mul_u32_u24 v16, 192, v22')
    a('v_lshl_add_u32 v16, v21, 3, v16')
    a('s_lshl_b32 s41, s26, 1')
    a('s_add_u32 s41, s41, s27')
    a('s_mul_i32 s41, s41, %d' % YP)
    a('s_add_u32 s41, s41, %d' % YB)
    a('v_add_u32 v%d, s41, v16' % YW)
    a('s_mov_b32 s52, 0x01000100')
    a('s_mov_b32 s53, 0x03020302')
    a('v_bfe_u32 v16, v2, 2, 2')
    a('v_mul_u32_u24 v16, %d, v16' % YP)
    a('v_lshl_add_u32 v16, v22, 3, v16')
    a('v_and_b32 v17, 3, v2')
    a('v_mul_u32_u24 v17, 192, v17')
    a('v_add_u32 v16, v17, v16')
    a('s_lshl_b32 s41, s26, 5')
    a('s_add_u32 s41, s41, %d' % YB)
    a('v_add_u32 v%d, s41, v16' % YR)
    a('s_lshl_b32 s41, s27, 11')
    a('s_add_u32 s41, s41, s40')
    a('s_add_u32 s41, s41, 64')
    a('v_add_u32 v20, s41, v3')
    a('s_lshl_b32 s43, s33, 16')
    a('s_and_b32 s33, s33, 0xffff0000')
    a('s_bitcmp0_b32 s29, 0')
    a('s_cselect_b32 s33, s43, s33')
    a('s_cmp_eq_u32 s27, 0')
    a('s_cselect_b32 s33, s33, 0')
    a('s_cselect_b32 s46, 0, s46')
    a('v_mov_b32 v%d, s46' % HP)
    a('v_cmp_eq_u32 vcc, 0, v2')
    stamp(a, 2)
    a('v_lshlrev_b32 v21, 16, v%d' % HD)
    a('v_and_b32 v22, 0xffff0000, v%d' % HD)
    a('v_add_f32 v21, s33, v21')
    a('v_cvt_pk_bf16_f32 v21, v21, v22')
    a('v_cndmask_b32 v%d, v%d, v21, vcc' % (HD, HD))
    for i in range(2):
        a('ds_write_b128 v20, %s offset:%d' % (vr(HD + 4 * i, 4), 1024 * i))
        a('v_mov_b32_dpp v%d, v%d wave_shr:1 row_mask:0xf bank_mask:0xf' % (HP + i, HD + 4 * i + 3))
        if i < 1:
            a('v_mov_b32_dpp v%d, v%d wave_ror:1 row_mask:0xf bank_mask:0xf' % (HP + i + 1, HD + 4 * i + 3))
        for d in (1, 2, 3, 0):
            prev = HP + i if d == 0 else HD + 4 * i + d - 1
            a('v_alignbit_b32 v%d, v%d, v%d, 16' % (HO + 4 * i + d, HD + 4 * i + d, prev))
        a('ds_write_b128 v20, %s offset:%d' % (vr(HO + 4 * i, 4), 4160 + 1024 * i))
    a('s_lshl_b32 s45, s27, 11')
    a('s_add_u32 s45, s45, s44')
    ql = []
    for m in range(4):
        ql.append(a('buffer_load_dwordx2 %s, v%d, s[48:51], s45 offen' % (vr(Q + 2 * m, 2), QA)))
        if m < 3:
            a('s_add_u32 s45, s45, 4096')
    a('v_and_b32 v2, 7, v2')
    a('v_lshlrev_b32 v2, 2, v2')
    a('s_lshl_b32 s41, s28, 2')
    a('v_mov_b32 v1, s41')
    a('s_cmp_lg_u32 s27, 0')
    a.wait_for(*dm)
    a.wait_all(vm=False)
    a('s_barrier')
    stamp(a, 3)
    a('s_cbranch_scc1 L_k2a_hi')
    pend = list(a.vm)

    def stream(hf):
        where = {}
        for i in range(6):
            where[('A', i)] = 64 + 32 * i
            where[('B', i)] = 80 + 32 * i
        for k in 'AB':
            where[(k, 6)] = where[(k, 3)]
            where[(k, 7)] = where[(k, 4)]

        def freg(kind, blk, rho, off=0, n=4):
            return vr(where[(kind, blk)] + 4 * rho + off, n)

        def reads_of(kind, blk, rho):
            if kind == 'A':
                aa = 8 * blk + rho
                o = (aa & 15) * 16
                return ['ds_read2_b32 %s, v%d offset0:%d offset1:%d' % (freg(kind, blk, rho, 0, 2), AA + (aa >> 4), o, o + 1),
                        'ds_read2_b32 %s, v%d offset0:%d offset1:%d' % (freg(kind, blk, rho, 2, 2), AA + (aa >> 4), o + 2, o + 3)]
            beta = 8 * blk - rho
            return ['ds_read_b128 %s, v%d offset:%d' % (freg(kind, blk, rho), BA + (beta & 3), UB + 1024 * (beta >> 2) - 1280)]

        ORD = {
            0: [[(0, 0), (0, 1), (0, 2), (1, 0), (1, 1), (1, 2), (2, 0), (2, 1), (2, 2)],
                [(0, 3), (1, 3), (3, 0), (3, 1)],
                [(0, 4), (4, 0)], [(3, 2), (2, 3), (1, 4), (4, 1)], [(0, 5), (5, 0)],
                [(3, 3), (3, 4), (4, 3)], [(4, 2), (2, 4)], [(5, 1), (1, 5)], [(0, 6), (6, 0)],
                [(5, 2), (2, 5)], [(1, 6), (6, 1)], [(0, 7), (7, 0)]],
            1: [[(0, 0), (0, 1), (0, 2), (0, 3), (1, 0), (1, 1), (1, 2), (1, 3), (2, 0), (2, 1), (2, 2), (2, 3)],
                [(3, 0), (3, 1), (3, 2), (3, 3)],
                [(0, 4), (1, 4), (4, 0), (4, 1)], [(3, 4), (4, 3)], [(0, 5), (5, 0)],
                [(4, 2), (2, 4)], [(5, 1), (1, 5)], [(0, 6), (6, 0)],
                [(5, 2), (2, 5)], [(1, 6), (6, 1)], [(0, 7), (7, 0)]],
            2: [[(0, 0), (0, 1), (0, 2), (0, 3), (1, 0), (1, 1), (1, 2), (1, 3), (2, 0), (2, 1), (2, 2), (2, 3), (3, 0), (3, 1), (3, 2), (3, 3)],
                [(0, 4), (1, 4), (4, 0), (4, 1)], [(0, 5), (5, 0)], [(3, 4), (4, 3)],
                [(4, 2), (2, 4)], [(5, 1), (1, 5)], [(0, 6), (6, 0)],
                [(5, 2), (2, 5)], [(1, 6), (6, 1)], [(0, 7), (7, 0)]],
        }
        mm = []
        for grp in ORD[int(OPT.get('ord', 1))]:
            for rho in range(4):
                for (al, ga) in grp:
                    mm.append((al, ga, rho))
        assert len(mm) == 144 and len(set(mm)) == 144
        lastuse = {}
        for i, (al, ga, rho) in enumerate(mm):
            lastuse[('A', al, rho)] = i
            lastuse[('B', ga, rho)] = i
        rs, seen = [], set()
        for i, (al, ga, rho) in enumerate(mm):
            for key in (('B', ga, rho), ('A', al, rho)):
                if key not in seen:
                    seen.add(key)
                    kind, blk, _ = key
                    earliest = lastuse[(kind, blk - 3, rho)] + 1 if blk >= 6 else 0
                    for t in reads_of(*key):
                        rs.append((t, earliest, i))
        done_at = {}
        for i, (al, ga, rho) in enumerate(mm):
            done_at[al + ga] = i
        ev, ywr = {}, {}

        def add(slot, fn):
            ev.setdefault(slot, []).append(fn)

        def qload(j):
            a('s_add_u32 s45, s44, %d' % (2048 * j))
            a('buffer_load_dwordx2 %s, v%d, s[48:51], s45 offen' % (vr(Q + 2 * (j >> 1), 2), QA))

        def ep_check(j):
            a('v_cmp_eq_u32 vcc, 0, v3')
            a('s_cbranch_vccz L_ok_%d' % j)
            a.label('L_retry_%d' % j)
            if j < 7:
                a.raw('    s_sleep 1')
            a.raw('    ds_read_b32 v3, v2 offset:%d' % (32 * j))
            a.raw('    s_waitcnt lgkmcnt(0)')
            a.raw('    v_cmp_eq_u32 vcc, 0, v3')
            a.raw('    s_nop 1')
            a.raw('    s_cbranch_vccnz L_retry_%d' % j)
            a.label('L_ok_%d' % j)

        def gate_ops(j):
            y, q = ACC + 4 * j, Q + 2 * (j >> 1)
            pre, ops = [], []
            if j == 7:
                for p in range(2):
                    pre.append('v_perm_b32 v%d, v%d, v%d, s52' % (16 + 2 * p, q + p, q + p))
                    pre.append('v_perm_b32 v%d, v%d, v%d, s53' % (17 + 2 * p, q + p, q + p))
                for p in range(4):
                    ops.append('v_dot2_f32_bf16 v%d, v%d, v%d, 0' % (20 + p, y + p, 16 + p))
            else:
                for p in range(2):
                    pre.append('v_lshlrev_b32 v%d, 16, v%d' % (16 + 2 * p, q + p))
                    pre.append('v_and_b32 v%d, 0xffff0000, v%d' % (17 + 2 * p, q + p))
                for p in range(4):
                    ops.append('v_lshlrev_b32 v%d, 16, v%d' % (20 + p, y + p))
                    ops.append('v_and_b32 v%d, 0xffff0000, v%d' % (y + p, y + p))
                for p in range(4):
                    ops.append('v_add_f32 v%d, v%d, v%d' % (20 + p, 20 + p, y + p))
                for p in range(4):
                    ops.append('v_mul_f32 v%d, v%d, v%d' % (20 + p, 20 + p, 16 + p))
            pre.append('s_add_u32 s35, s34, %d' % (256 * 2304 * j))
            ops.append('v_cvt_pk_bf16_f32 v%d, v20, v21' % q)
            ops.append('v_cvt_pk_bf16_f32 v%d, v22, v23' % (q + 1))
            ops.append('buffer_store_dwordx2 %s, v%d, s[36:39], s35 offen' % (vr(q, 2), SA) + ST2A)
            return pre, ops

        SP = int(OPT.get('sp', 6))
        DW, DP, DC, DR = int(OPT.get('dw', 4)), int(OPT.get('dp', 3)), int(OPT.get('dc', 4)), int(OPT.get('dr', 4))
        CAP, AGE, LA = int(OPT.get('cap', 2)), int(OPT.get('age', 6)), int(OPT.get('la', 10))
        wch, fch, gch = [], [], []
        busy = 0
        for j in range(8):
            t = ACC + 4 * j
            s0 = done_at[j] + DW
            wch.append([s0, 0, 1, 'v_cvt_pk_bf16_f32 v%d, v%d, v%d' % (t, t, t + 1), None])
            wch.append([s0, 0, 1, 'v_cvt_pk_bf16_f32 v%d, v%d, v%d' % (t + 1, t + 2, t + 3), None])
            wch.append([s0, 0, 1, 'ds_write_b64 v%d, %s offset:%d' % (YW, vr(t, 2), 8 * YP * j), None])
            wch.append([s0, 0, 1, 'ds_write_b32 v1, v%d offset:%d' % (YW, 32 * j), ('w', j)])
            s1 = max(s0 + 2 + DP, busy)
            busy = s1 + SP
            if (j & 1) == hf:
                pre, ops = gate_ops(j)
                for tx in pre:
                    gch.append([31, 0, 1, tx, None])
                fch.append([s1, 0, 1, 'ds_read_b32 v3, v2 offset:%d' % (32 * j), ('n', j)])
                fch.append([0, DC, 3, (lambda j=j: ep_check(j)), None])
                fch.append([0, 0, 1, 'ds_read_b64_tr_b16 %s, v%d offset:%d' % (vr(t, 2), YR, 8 * YP * j), None])
                fch.append([0, 0, 1, 'ds_read_b64_tr_b16 %s, v%d offset:%d' % (vr(t + 2, 2), YR, 8 * YP * j + 4 * YP), ('f', j)])
                for k, tx in enumerate(ops):
                    gch.append([0, 0, 2 if k == 0 else 1, tx, ('g', j) if k == 0 else None])
        if OPT.get('prio', '') == str(hf):
            a('s_setprio 1')
        sched = [0] * len(rs)
        nxt_free = 10 ** 9
        for k in range(len(rs) - 1, -1, -1):
            nxt_free = min(nxt_free - 1, rs[k][2] - LA)
            sched[k] = nxt_free
        issued = {}
        ri = 0
        while sched[ri] < 0:
            issued[a(rs[ri][0])] = -1 - 0 * ri
            ri += 1
            if ri >= int(OPT.get('pre', 12)):
                break
        started = set()
        written = {}
        last = {id(wch): -99, id(fch): -99, id(gch): -99}
        fetched = {}
        SL = [int(x) for x in OPT.get('sl', '36,72,108').split(',')]

        def try_side(i, room, want):
            progress = True
            while progress:
                progress = False
                for ch in (wch, fch, gch):
                    if not ch:
                        continue
                    e, gap, cost, act, tag = ch[0]
                    if e > i or last[id(ch)] + gap > i:
                        continue
                    if tag and tag[0] == 'n' and (tag[1] not in written or written[tag[1]] + DP > i):
                        continue
                    if tag and tag[0] == 'g' and (tag[1] not in fetched or fetched[tag[1]][0] + DR > i):
                        continue
                    cls = 'v' if callable(act) or act.startswith(('v_', 's_')) else 'm'
                    cost = 0 if (not callable(act) and act.startswith('s_')) else 1
                    if (want and cls != want) or cost > room:
                        continue
                    ch.pop(0)
                    ABL = OPT.get('abl', '')
                    skip = False
                    if callable(act):
                        skip = 'p' in ABL
                    else:
                        skip = (('w' in ABL and act.startswith('ds_write')) or ('v' in ABL and act.startswith('v_') and ch is gch)
                                or ('c' in ABL and act.startswith('v_') and ch is wch) or ('s' in ABL and act.startswith('buffer_store'))
                                or ('p' in ABL and act.startswith('ds_read_b32')) or ('t' in ABL and act.startswith('ds_read_b64_tr') ))
                    if skip:
                        if tag and tag[0] == 'f':
                            fetched[tag[1]] = (i, None)
                    elif callable(act):
                        act()
                    else:
                        if tag and tag[0] == 'g':
                            a.wait_for(fetched[tag[1]][1])
                        ins = a(act)
                        if ins.kind == 'ds':
                            issued[ins] = i
                        if tag and tag[0] == 'f':
                            fetched[tag[1]] = (i, ins)
                        if act.startswith('buffer_store') and 'v' in OPT:
                            print('hf', hf, 'store at slot', i)
                    if tag and tag[0] == 'w':
                        written[tag[1]] = i
                    last[id(ch)] = i
                    room -= cost
                    progress = True
                    break
            return room

        from asmlib import Ins
        for i, (al, ga, rho) in enumerate(mm):
            room = CAP
            while ri < len(rs) and rs[ri][2] <= i:
                issued[a(rs[ri][0])] = i; ri += 1
            j = al + ga
            acc = vr(ACC + 4 * j, 4)
            tx = '%s %s, %s, %s, %s' % (MF, acc, freg('A', al, rho), freg('B', ga, rho), acc if j in started else '0')
            need = [o for o in a.lg if o.w & Ins(tx).r]
            if need:
                a.wait_for(*(need + [o for o in a.lg if issued.get(o, i) <= i - AGE]))
            a(tx)
            started.add(j)
            if ri < len(rs) and rs[ri][1] <= i and sched[ri] <= i:
                issued[a(rs[ri][0])] = i; ri += 1
                room -= 1
            if i == 30:
                a.wait_all(lg=False)
            room = try_side(i, room, 'm')
            try_side(i, room, 'v')
            if i in SL:
                stamp(a, 4 + SL.index(i))
        stamp(a, 4 + len(SL))
        i = 144
        while wch or fch or gch:
            try_side(i, 99, None)
            i += 1
        stamp(a, 5 + len(SL))
        endpgm(a, 1, 7 + len(SL))

    stream(0)
    a.reset_state()
    a.raw('.p2align 6')
    a.label('L_k2a_hi')
    a.vm = list(pend)
    stream(1)


def k2b(a):
    a.comment('---- K2/B: second sequence stage; s3 = unit ----')
    stamp(a, 0)
    a('s_cmp_lt_u32 s28, 4')
    a('s_cbranch_scc1 L_k2b_comp')
    a('v_lshlrev_b32 v3, 4, v2')
    a('s_mul_i32 s29, s3, 73728')
    a('s_sub_u32 s30, s28, 4')
    a('s_mul_i32 s30, s30, 4608')
    a('s_add_u32 s29, s29, s30')
    a.raw('    s_waitcnt lgkmcnt(0)')
    a('s_add_u32 s12, s12, %d' % G_OFF)
    a('s_addc_u32 s13, s13, 0')
    srd(a, 16, 12, G_SIZE)
    dm = [[] for _ in range(4)]
    for kap in range(4):
        o = 18432 * kap
        a('s_add_u32 m0, s30, %d' % o)
        a('s_add_u32 s31, s29, %d' % o)
        for i in range(4):
            dm[kap].append(a('buffer_load_dwordx4 v3, s[16:19], s31 offen offset:%d lds' % (1024 * i)))
        a('s_add_u32 m0, s30, %d' % (o + 4096))
        a('s_add_u32 s31, s29, %d' % (o + 4096))
        a('s_mov_b32 exec_hi, 0')
        dm[kap].append(a('buffer_load_dwordx4 v3, s[16:19], s31 offen lds'))
        a('s_mov_b32 exec_hi, -1')
    for kap in range(4):
        a.wait_for(*dm[kap])
        a('s_barrier')
    a('s_endpgm')
    a.reset_state()
    a.label('L_k2b_comp')
    a('v_and_b32 v4, 15, v2')
    a('v_lshrrev_b32 v5, 4, v2')
    a('v_bfe_u32 v8, v2, 2, 2')
    a('v_lshl_add_u32 v6, v5, 3, v8')
    a('v_mul_u32_u24 v6, 576, v6')
    a('v_and_b32 v9, 3, v2')
    a('v_lshl_add_u32 v6, v9, 4, v6')
    a('v_and_b32 v10, 1, v5')
    a('v_lshl_add_u32 v6, v10, 3, v6')
    a('v_xor_b32 v7, 8, v6')
    CF, SF = 16, 32
    a('s_lshl_b32 s31, s28, 4')
    a('v_add_u32 v10, s31, v4')
    a('v_cvt_f32_u32 v10, v10')
    a('v_add_f32 v10, 0.5, v10')
    a('v_mul_f32 v10, 0x3c000000, v10')
    a('v_lshlrev_b32 v11, 3, v5')
    a('v_cvt_f32_u32 v11, v11')
    a('v_mul_f32 v12, v11, v10')
    a('v_add_f32 v13, v12, v10')
    a('v_add_f32 v11, v10, v10')
    for kap in range(4):
        for i in range(0, 8, 2):
            a('v_cos_f32 v48, v12')
            a('v_cos_f32 v49, v13')
            a('v_sin_f32 v50, v12')
            a('v_sin_f32 v51, v13')
            if i < 6:
                a('v_add_f32 v12, v12, v11')
                a('v_add_f32 v13, v13, v11')
            elif kap < 3:
                a('v_fmamk_f32 v12, v10, 0x41d00000, v12')
                a('v_fmamk_f32 v13, v10, 0x41d00000, v13')
            a('v_cvt_pk_bf16_f32 v%d, v48, v49' % (CF + 4 * kap + i // 2))
            a('v_cvt_pk_bf16_f32 v%d, v50, v51' % (SF + 4 * kap + i // 2))
    a.raw('    s_waitcnt lgkmcnt(0)')
    srd(a, 20, 6, 2 * ARR)
    a('s_mul_i32 s33, s3, 57')
    a('s_lshr_b32 s33, s33, 9')
    a('s_mul_i32 s34, s33, 9')
    a('s_sub_u32 s34, s3, s34')
    a('s_lshl_b32 s35, s33, 2')
    a('v_add_u32 v12, s35, v8')
    a('s_lshl_b32 s35, s28, 8')
    a('v_lshl_add_u32 v13, v5, 6, s35')
    a('v_add_u32 v14, v12, v13')
    a('v_sub_u32 v15, v12, v13')
    a('v_add_u32 v15, %d, v15' % (16 * 127))
    a('s_lshl_b32 s35, s34, 6')
    a('s_add_u32 s36, s35, 1152')
    a('v_lshl_add_u32 v48, v9, 4, s36')
    a('s_sub_u32 s36, %d, s35' % (2304 - 16))
    a('v_lshlrev_b32 v49, 4, v9')
    a('v_sub_u32 v49, s36, v49')
    a('s_movk_i32 s37, 2304')
    AD = 52
    for i in range(4):
        for sg in range(2):
            a('v_add_u32 v50, %d, v%d' % (16 * i if sg == 0 else -16 * i, 14 + sg))
            a('v_mad_u32_u24 v%d, v50, s37, v48' % (AD + 4 * i + 2 * sg))
            a('v_sub_u32 v50, 2048, v50')
            a('v_and_b32 v50, 2047, v50')
            a('v_mad_u32_u24 v%d, v50, s37, v49' % (AD + 4 * i + 2 * sg + 1))
    PA, QA, FB = 68, 104, 140
    NB = 8
    items = [(kap, tau, part) for kap in range(4) for tau in range(9) for part in range(2)]

    def rd(n):
        kap, tau, part = items[n]
        f = FB + 4 * (n % NB)
        for h in range(2):
            a('ds_read_b64_tr_b16 %s, v%d offset:%d' % (vr(f + 2 * h, 2), 6 + part, kap * 18432 + h * 2304 + tau * 64))

    LA = 6
    nxt = 0
    stamp(a, 1)
    for n in range(72):
        while nxt < min(72, n + LA + 1):
            if nxt % 18 == 0:
                a('s_barrier')
                stamp(a, 2 + nxt // 18)
            rd(nxt); nxt += 1
        kap, tau, part = items[n]
        acc = vr((QA if part else PA) + 4 * tau, 4)
        a('%s %s, %s, %s, %s' % (MF, acc, vr((SF if part else CF) + 4 * kap, 4), vr(FB + 4 * (n % NB), 4), acc if kap else '0'))
    stamp(a, 6)
    YT, ST = 172, 192
    k = 0
    for i in range(4):
        for sg in range(2):
            y = YT + 10 * sg
            for tau in range(9):
                a('%s v%d, v%d, v%d' % ('v_sub_f32' if sg else 'v_add_f32', y + tau, PA + 4 * tau + i, QA + 4 * tau + i))
            st = ST + 8 * (k % 4)
            for d in range(4):
                a('v_cvt_pk_bf16_f32 v%d, v%d, v%d' % (st + d, y + 2 * d, y + 2 * d + 1))
            a('buffer_store_dwordx4 %s, v%d, s[20:23], 0 offen' % (vr(st, 4), AD + 4 * i + 2 * sg) + ST2B)
            for d in range(4):
                a('v_cvt_pk_bf16_f32 v%d, v%d, v%d' % (st + 4 + d, y + 8 - 2 * d, y + 7 - 2 * d))
            a('buffer_store_dwordx4 %s, v%d, s[20:23], 0 offen' % (vr(st + 4, 4), AD + 4 * i + 2 * sg + 1) + ST2B)
            k += 1
    stamp(a, 7)
    endpgm(a, 1, 9)


def kd(a, name, vgpr, accum, sgpr=None):
    sgpr = sgpr or (102 if STAMP else 64)
    a.raw('.p2align 6')
    a.raw('.amdhsa_kernel ' + name)
    a.raw('  .amdhsa_next_free_vgpr %d' % vgpr)
    a.raw('  .amdhsa_next_free_sgpr %d' % sgpr)
    a.raw('  .amdhsa_accum_offset %d' % accum)
    a.raw('  .amdhsa_group_segment_fixed_size 0')
    a.raw('  .amdhsa_kernarg_size 112')
    a.raw('  .amdhsa_user_sgpr_count 2')
    a.raw('  .amdhsa_user_sgpr_kernarg_segment_ptr 1')
    a.raw('  .amdhsa_system_sgpr_workgroup_id_x 1')
    a.raw('.end_amdhsa_kernel')


def main():
    a = Asm()
    ref = open('cdna_kernels/%s.s.ref' % NAME).read().splitlines()
    for l in ref:
        if l.startswith(';   offset') or l.startswith('; Kernarg'):
            a.raw(l)
    a.raw('; @launch kernel=k1_kernel grid=(256,1,1) block=(576,1,1) lds=%d' % int(OPT.get('lds1', 82944)))
    a.raw('; @launch kernel=k2_kernel grid=(184,1,1) block=(512,1,1) lds=102144')
    a.raw('.amdgcn_target "amdgcn-amd-amdhsa--gfx950"')
    a.raw('.text')
    a.raw('.globl k1_kernel')
    a.raw('.p2align 8')
    a.raw('.type k1_kernel,@function')
    a.label('k1_kernel')
    a.raw('    s_load_dwordx8 s[4:11], s[0:1], 0')
    a.raw('    s_load_dwordx2 s[44:45], s[0:1], 48')
    a.raw('    s_load_dwordx2 s[46:47], s[0:1], 104')
    a('v_lshrrev_b32 v1, 6, v0')
    a('v_and_b32 v2, 63, v0')
    a('v_readfirstlane_b32 s28, v1')
    a('s_cmp_ge_u32 s2, 128')
    a('s_cbranch_scc1 L_k1a')
    a('s_cmp_lt_u32 s28, 8')
    a('s_cbranch_scc1 L_k1b')
    a.raw('    v_lshlrev_b32 v1, 6, v2')
    a('s_cmp_ge_u32 s2, 48')
    a('s_cbranch_scc1 L_k1_nocode')
    a.raw('    s_getpc_b64 s[56:57]')
    a.label('L_k1_pc')
    a.raw('    s_and_b32 s57, s57, 0xffff')
    a.raw('    s_mov_b32 s58, L_code_end-L_k1_pc')
    a.raw('    s_mov_b32 s59, 0x20000')
    a.raw('    s_lshr_b32 s60, s2, 3')
    a.raw('    s_lshl_b32 s60, s60, 12')
    a.raw('    buffer_load_dword v3, v1, s[56:59], s60 offen')
    a.label('L_k1_nocode')
    HP2 = int(OPT.get('hp2', 0))
    if HP2:
        a.raw('    s_load_dwordx2 s[56:57], s[0:1], 32')
        a.raw('    s_and_b32 s60, s2, 7')
        a.raw('    s_lshr_b32 s61, s2, 3')
        a.raw('    s_lshl_b32 s60, s60, 4')
        a.raw('    s_add_u32 s60, s60, s61')
        a.raw('    s_lshl_b32 s61, s60, 11')
        a.raw('    s_add_u32 s61, s61, %d' % (128 * 16384))
        a.raw('    s_lshl_b32 s60, s60, 14')
        a.raw('    s_mov_b32 s58, %d' % ARR)
        a.raw('    s_mov_b32 s59, 0x20000')
        if HP2 == 2:
            a.raw('    v_lshlrev_b32 v1, 7, v2')
        a.raw('    v_lshlrev_b32 v8, 5, v2')
        a.raw('    s_waitcnt lgkmcnt(0)')
        a.raw('    s_and_b32 s57, s57, 0xffff')
        if 'hsl' in OPT:
            a.raw('    s_sleep %s' % OPT['hsl'])
        for i in range(4 if HP2 == 1 else 2):
            a.raw('    buffer_load_dword v%d, v1, s[56:59], s60 offen' % (4 + i))
            a.raw('    s_add_u32 s60, s60, %d' % (4096 * HP2))
        a.raw('    buffer_load_dword v9, v8, s[56:59], s61 offen')
    a.label('L_k1_exit')
    a('s_endpgm')
    a.reset_state()
    a.label('L_k1b')
    k1b(a)
    a.reset_state()
    a.raw('.p2align 6')
    a.label('L_k1a')
    a('s_cmp_ge_u32 s2, 256')
    a('s_cbranch_scc1 L_k1_exit')
    a('s_sub_u32 s3, s2, 128')
    a('s_and_b32 s29, s3, 7')
    a('s_and_b32 s31, s3, 0x78')
    a('s_add_u32 s31, s31, s28')
    a('s_lshl_b32 s30, s29, 4')
    a('s_lshr_b32 s3, s3, 3')
    a('s_add_u32 s3, s3, s30')
    a('s_cmp_lt_u32 s28, 8')
    a('s_cselect_b32 s29, s29, 8')
    a('s_cselect_b32 s31, s31, s3')
    a('s_mul_i32 s34, s28, 7168')
    k1a(a)
    a.reset_state()
    a.raw('.globl k2_kernel')
    a.raw('.p2align 8')
    a.raw('.type k2_kernel,@function')
    a.label('k2_kernel')
    CURK[0] = 1
    a.raw('    s_load_dwordx4 s[8:11], s[0:1], 32')
    a.raw('    s_load_dwordx2 s[6:7], s[0:1], 88')
    a.raw('    s_load_dwordx2 s[12:13], s[0:1], 104')
    a('v_lshrrev_b32 v1, 6, v0')
    a('v_and_b32 v2, 63, v0')
    a('v_readfirstlane_b32 s28, v1')
    a('s_cmp_ge_u32 s2, 144')
    a('s_cbranch_scc1 L_k2b')
    a('s_and_b32 s4, s2, 7')
    a('s_lshr_b32 s5, s2, 3')
    a('s_lshl_b32 s3, s4, 4')
    a('s_add_u32 s3, s3, s5')
    a('s_lshl_b32 s4, s4, 1')
    a('s_add_u32 s4, s4, s5')
    a('s_add_u32 s4, s4, 112')
    a('s_cmp_lt_u32 s5, 16')
    a('s_cselect_b32 s3, s3, s4')
    k2a(a)
    a.reset_state()
    a.raw('.p2align 6')
    a.label('L_k2b')
    a('s_sub_u32 s3, s2, 144')
    a('s_cmp_ge_u32 s3, 36')
    a('s_cbranch_scc1 L_k2_exit')
    k2b(a)
    a.label('L_k2_exit')
    a('s_endpgm')
    a.label('L_code_end')
    a.raw('.section .rodata,"a"')
    kd(a, 'k1_kernel', 168, 168)
    kd(a, 'k2_kernel', 256, 256)
    out = sys.argv[1] if len(sys.argv) > 1 else 'cdna_kernels/%s.s' % NAME
    open(out, 'w').write(a.text())
    print('wrote', out, 'lines', len(a.out), 'auto nops', a.nops)


main()
```
